```python
import torch

def _softmax(x, axis=-1):
    return torch.softmax(x, dim=axis)
def _gelu(x):
    return torch.nn.functional.gelu(x, approximate="tanh")
def _silu(x):
    return torch.nn.functional.silu(x)
def _sigmoid(x):
    return torch.sigmoid(x)
def _layernorm(x, axis=-1, eps=1e-5):
    m = x.mean(dim=axis, keepdim=True)
    v = x.var(dim=axis, keepdim=True, unbiased=False)
    return (x - m) / torch.sqrt(v + eps)
def _scatter_add(tgt, idx, src, axis=0):
    return tgt.clone().index_add_(axis, idx, src)
def _segment_sum(src, seg, n):
    out = torch.zeros((n,) + src.shape[1:], dtype=src.dtype)
    return out.index_add_(0, seg, src)
def _pad(x, pw):
    flat = tuple(v for pair in reversed(pw) for v in pair)
    return torch.nn.functional.pad(x, flat)

kernel_name = 'parallel_sum__sliding_block_cached__dense_activation_gelu__decode'

def setup_inputs():

    _w = (lambda a: (lambda t: t.to(torch.bfloat16) if t.is_floating_point() else t)(torch.as_tensor(a)))
    def _A_setup():
        B, Sq, D = 1, 1, 448
        Hq, Hkv, Sk, Dh = 16, 8, 8192, 256
        assert Hq % Hkv == 0, (Hq, Hkv)
        return {
            "x": _w((lambda *s: torch.randn(*s, dtype=torch.bfloat16) * 0.05)(B, Sq, D)),
            "k_cache": _w((lambda *s: torch.randn(*s, dtype=torch.bfloat16) * 1.6)(B, Hkv, Sk, Dh)),
            "v_cache": _w((lambda *s: torch.randn(*s, dtype=torch.bfloat16) * 0.4)(B, Hkv, Sk, Dh)),
            "wq": _w((lambda *s: torch.randn(*s, dtype=torch.bfloat16) * 1.6)(D, Hq * Dh) * (D ** -0.5)),
            "wo": _w((lambda *s: torch.randn(*s, dtype=torch.bfloat16) * 0.4)(Hq * Dh, D) * ((Hq * Dh) ** -0.5)),
        }
    _A_in = _A_setup()

    def _B_setup():
        B, S, D, F = 1, 1, 448, 1792
        return {
            "x": _w((lambda *s: torch.randn(*s, dtype=torch.bfloat16) * 0.05)(B, S, D)),
            "w1": _w((lambda *s: torch.randn(*s, dtype=torch.bfloat16) * 0.8)(D, F) * (D ** -0.5)),
            "b1": _w((lambda *s: torch.randn(*s, dtype=torch.bfloat16) * 12.8)(F) * 0.01),
            "w2": _w((lambda *s: torch.randn(*s, dtype=torch.bfloat16) * 0.2)(F, D) * (F ** -0.5)),
            "b2": _w((lambda *s: torch.randn(*s, dtype=torch.bfloat16) * 1.6)(D) * 0.01),
        }
    _B_in = _B_setup()

    return {
        "A_x": _A_in["x"],
        "A_k_cache": _A_in["k_cache"],
        "A_v_cache": _A_in["v_cache"],
        "A_wq": _A_in["wq"],
        "A_wo": _A_in["wo"],
        "B_x": _B_in["x"],
        "B_w1": _B_in["w1"],
        "B_b1": _B_in["b1"],
        "B_w2": _B_in["w2"],
        "B_b2": _B_in["b2"],
    }

def reference(A_x, A_k_cache, A_v_cache, A_wq, A_wo, B_x, B_w1, B_b1, B_w2, B_b2):
    def _A_ref(x, k_cache, v_cache, wq, wo):
        B, Sq, D = x.shape
        Hq, Dh = 16, 256
        Hkv, Sk = k_cache.shape[1], k_cache.shape[2]
        W = min(4096, max(256, Sk // 4))
        rep = Hq // Hkv
        q = (lambda x, *d: x.permute(*d))((x @ wq).reshape(B, Sq, Hq, Dh), 0, 2, 1, 3)
        k = (lambda x, n, axis: torch.repeat_interleave(x, n, dim=axis))(k_cache[:, :, Sk - W:, :], rep, axis=1)
        v = (lambda x, n, axis: torch.repeat_interleave(x, n, dim=axis))(v_cache[:, :, Sk - W:, :], rep, axis=1)
        scores = torch.einsum("bhqd,bhkd->bhqk", q, k) * (Dh ** -0.5)
        p = _softmax(scores, axis=-1)
        o = torch.einsum("bhqk,bhkd->bhqd", p, v)
        return (lambda x, *d: x.permute(*d))(o, 0, 2, 1, 3).reshape(B, Sq, Hq * Dh) @ wo

    def _B_ref(x, w1, b1, w2, b2):
        h = torch.einsum("bsd,df->bsf", x, w1) + b1
        h = _gelu(h)
        return torch.einsum("bsf,fd->bsd", h, w2) + b2

    x = A_x
    xn = _layernorm(x, axis=-1)
    return x + _A_ref(xn, A_k_cache, A_v_cache, A_wq, A_wo) + _B_ref(xn, B_w1, B_b1, B_w2, B_b2)
```

```python
import re

TRANS = ('v_exp_', 'v_log_', 'v_rcp_', 'v_rsq_', 'v_sqrt_', 'v_sin_', 'v_cos_')

def regs_of(tok):
    tok = tok.strip()
    tok = tok.lstrip('-')
    m = re.fullmatch(r'abs\((.*)\)', tok)
    if m: tok = m.group(1)
    tok = tok.strip('|')
    m = re.fullmatch(r'([vsa])(\d+)', tok)
    if m: return {(m.group(1), int(m.group(2)))}
    m = re.fullmatch(r'([vsa])\[(\d+):(\d+)\]', tok)
    if m: return {(m.group(1), i) for i in range(int(m.group(2)), int(m.group(3)) + 1)}
    if tok in ('vcc', 'vcc_lo', 'vcc_hi'): return {('s', 'vcc')}
    if tok in ('exec', 'exec_lo', 'exec_hi'): return {('s', 'exec')}
    if tok == 'm0': return {('s', 'm0')}
    return set()

class Ins:
    def __init__(self, text):
        self.text = text
        code = text.split(';')[0].strip()
        self.label = None
        self.op = None
        self.w = set(); self.r = set()
        self.cls = None
        if not code or code.startswith('.') and not code.endswith(':'):
            self.cls = 'none'; return
        if code.endswith(':'):
            self.label = code[:-1]; self.cls = 'none'; return
        parts = code.split(None, 1)
        self.op = op = parts[0]
        rest = parts[1] if len(parts) > 1 else ''
        ops = []; depth = 0; cur = ''
        for ch in rest:
            if ch in '[(': depth += 1
            if ch in '])': depth -= 1
            if ch == ',' and depth == 0:
                ops.append(cur.strip()); cur = ''
            else: cur += ch
        if cur.strip(): ops.append(cur.strip())
        mods = ''
        if ops:
            last = ops[-1].split(None, 1)
            ops[-1] = last[0]
            if len(last) > 1: mods = last[1]
        self.ops = ops; self.mods = mods
        R = [regs_of(o) for o in ops]
        self.dpp = ('_dpp' in op) or ('row_' in mods) or ('quad_perm' in mods)
        self.sdwa = '_sdwa' in op
        if op.startswith('v_mfma'):
            self.cls = 'mfma'; self.w = R[0]; self.A = R[1]; self.B = R[2]; self.C = R[3]
            self.r = R[1] | R[2] | R[3]
            self.passes = 8 if ('32x32x16' in op or '16x16x4_f32' in op) else (16 if '32x32x2_f32' in op else 4)
            self.sgemm = op.endswith('_f32') and ('x4_f32' in op or 'x2_f32' in op or 'x1_' in op)
        elif op.startswith('v_'):
            self.cls = 'valu'
            if op == 'v_nop': return
            if op.startswith('v_permlane') and 'swap' in op:
                self.w = R[0] | R[1]; self.r = R[0] | R[1]
            elif op.startswith('v_cmp'):
                self.w = R[0]; self.r = set().union(*R[1:])
            elif op.startswith(('v_add_co', 'v_sub_co', 'v_addc_co', 'v_subb_co', 'v_mad_u64')):
                self.w = R[0] | R[1]; self.r = set().union(*R[2:])
            else:
                self.w = R[0]; self.r = set().union(*R[1:]) if len(R) > 1 else set()
                if op.startswith(('v_fmac', 'v_dot2c', 'v_pk_fmac', 'v_writelane')) or self.dpp or self.sdwa:
                    self.r |= R[0]
            self.trans = op.startswith(TRANS)
        elif op.startswith(('global_', 'buffer_', 'flat_')):
            self.cls = 'vmem'
            allr = set().union(*R) if R else set()
            if 'load' in op and 'lds' not in op and 'lds' not in mods.split():
                self.w = R[0]; self.r = set().union(*R[1:])
                if 'd16' in op: self.r |= R[0]
            elif 'atomic' in op and 'sc0' in mods.split() and op.startswith('global_'):
                self.w = R[0]; self.r = set().union(*R[1:])
            else:
                self.r = allr
            self.widestore = ('store' in op) and (op.endswith('x3') or op.endswith('x4'))
            self.sdata = set()
            if self.widestore:
                self.sdata = R[1] if op.startswith(('global_', 'flat_')) else R[0]
            self.ldsdma = ('lds' in op) or ('lds' in mods.split())
        elif op.startswith('ds_'):
            self.cls = 'ds'
            if op.startswith(('ds_read', 'ds_bpermute', 'ds_permute', 'ds_swizzle')) or '_rtn' in op:
                self.w = R[0]; self.r = set().union(*R[1:]) if len(R) > 1 else set()
            else:
                self.r = set().union(*R)
        elif op.startswith('s_'):
            self.cls = 'salu'
            if op.startswith(('s_cmp', 's_cbranch', 's_branch', 's_waitcnt', 's_nop', 's_barrier', 's_endpgm', 's_setprio', 's_sleep', 's_bitcmp')):
                self.r = set().union(*R) if R else set()
            else:
                self.w = R[0] if R else set()
                self.r = set().union(*R[1:]) if len(R) > 1 else set()
                if 'saveexec' in op: self.w |= {('s', 'exec')}
        else:
            raise ValueError('unknown op: ' + text)

    def states(self):
        if self.cls == 'none': return 0
        if self.op == 's_nop': return int(self.ops[0]) + 1
        return 1

def V(s): return {x for x in s if x[0] in 'va'}
def S(s): return {x for x in s if x[0] == 's'}

def need(p, c):
    n = 0
    if p.cls == 'valu':
        vw = V(p.w); sw = S(p.w)
        if c.cls == 'valu':
            if c.dpp and (vw & c.r): n = max(n, 2)
            if c.op.startswith('v_permlane') and (vw & c.r): n = max(n, 2)
            if c.op.startswith(('v_readlane', 'v_readfirstlane')) and (vw & c.r): n = max(n, 1)
            if getattr(p, 'trans', False) and (vw & c.r): n = max(n, 1)
            if (p.sdwa or 'op_sel:' in p.mods) and (vw & (c.r | c.w)): n = max(n, 1)
            if sw & c.r:
                n = max(n, 4 if c.op.startswith(('v_readlane', 'v_writelane')) else 2)
            if ('s', 'vcc') in sw and c.op.startswith('v_div_fmas'): n = max(n, 4)
        if c.cls == 'mfma' and (vw & c.r): n = max(n, 2)
        if c.cls == 'vmem' and (sw & c.r): n = max(n, 5)
        if c.cls in ('vmem', 'ds') and getattr(p, 'trans', False) and (vw & c.r): n = max(n, 1)
    if p.cls == 'mfma':
        k = {4: 0, 8: 1, 16: 2}[p.passes]
        if not p.sgemm:
            full = [8, 12, 20][k]; ovl = [6, 10, 18][k]; war = [3, 7, 15][k]
        else:
            full = [6, 10, 18][k]; ovl = [4, 8, 16][k]; war = 0
        if c.cls == 'mfma':
            if p.w & (c.A | c.B): n = max(n, full)
            if p.w & c.C and not (p.w == c.C and p.passes == c.passes and p.sgemm == c.sgemm): n = max(n, ovl)
            if p.w & c.w and not (p.w & c.C): n = max(n, ovl)
        elif c.cls in ('valu', 'vmem', 'ds'):
            if p.w & (c.r | c.w): n = max(n, full)
            if c.cls == 'valu' and (p.C & c.w): n = max(n, war)
    if p.cls == 'vmem' and getattr(p, 'widestore', False):
        if c.cls in ('valu', 'mfma') and (p.sdata & c.w): n = max(n, 2)
        elif c.cls in ('vmem', 'ds') and (p.sdata & c.w): n = max(n, 1)
    if p.cls == 'salu' and ('s', 'm0') in p.w:
        if c.cls == 'vmem' and c.ldsdma: n = max(n, 1)
    return n

def fix_hazards(lines, verbose=False):
    ins = [Ins(l) for l in lines]
    changed = True
    total = 0
    while changed:
        changed = False
        labels = {x.label: i for i, x in enumerate(ins) if x.label}
        preds = [[] for _ in ins]
        for i, x in enumerate(ins):
            if x.op in ('s_branch',) or (x.op and x.op.startswith('s_cbranch')):
                t = labels[x.ops[0]]
                preds[t].append(i)
            if i + 1 < len(ins) and x.op not in ('s_branch', 's_endpgm'):
                preds[i + 1].append(i)
        for i, c in enumerate(ins):
            if c.cls in ('none', 'salu'): continue
            worst = 0
            stack = [(p, 0) for p in preds[i]]
            seen = {}
            while stack:
                j, d = stack.pop()
                if d >= 20: continue
                if j in seen and seen[j] <= d: continue
                seen[j] = d
                p = ins[j]
                if p.cls != 'none':
                    n = need(p, c)
                    if n - d > worst: worst = n - d
                for q in preds[j]:
                    stack.append((q, d + p.states()))
            if worst > 0:
                if verbose: print('nop %d before: %s' % (worst, c.text.strip()))
                new = []
                k = worst
                while k > 0:
                    m = min(k, 16); new.append(Ins('    s_nop %d' % (m - 1))); k -= m
                ins[i:i] = new
                total += worst
                changed = True
                break
    return [x.text for x in ins]
```

```python
import sys, math, struct
sys.path.insert(0, 'work')
from asmlib import fix_hazards

NAME = 'parallel_sum__sliding_block_cached__dense_activation_gelu__decode'
def f2u(x): return struct.unpack('<I', struct.pack('<f', x))[0]
def hx(x): return '0x%08x' % (x & 0xffffffff)
def v(i): return 'v%d' % i
def vr(i, n): return 'v[%d:%d]' % (i, i + n - 1)
FULL = 'row_mask:0xf bank_mask:0xf'

def gen(stamps=False, spin_cap=200000, pollpos=8, pollgate='k7', wopos='v5', force_slow=False, prewrite=False, preo='nt',
        pretouch=False, outflag='', rdepth=1, codepf=True, gprio=3, bar0='x', kfirst=8, ackst=False, gap=0, small='', cpf='', pst='sc1', pld='sc1'):
    pst = pst.replace('_', ' '); pld = pld.replace('_', ' ')
    L = []
    def e(s): L.append('    ' + s)
    def lab(s): L.append(s + ':')
    NT = ' nt'
    WS_E = 0
    WS_Q = 0x1000
    WS_H = 0x11000
    WS_R = 0x20000
    WS_O = 0x100000
    OS_SLOW = 0x200000
    WS_T = 0x200000
    XN = 0; HV = 1024; QB = 2048; FL = 3072; ML = 3136; F3 = 3328; OL = 4096; G2 = 12288
    LDS = G2 + 4608
    sX, sK, sV, sWq, sWo, sW1, sB1 = 's[4:5]', 's[6:7]', 's[8:9]', 's[10:11]', 's[12:13]', 's[16:17]', 's[18:19]'
    sW2, sB2, sOut, sWs = 's[20:21]', 's[22:23]', 's[24:25]', 's[28:29]'
    sH, sC, sKV, sT, sW, sA, sB, sCnt, sHi, sCexp, sMF, sFb, sTq = 's30', 's31', 's32', 's33', 's34', 's35', 's36', 's37', 's38', 's39', 's40', 's41', 's46'
    sTb = ['s42', 's43', 's44', 's45']
    sNU = 's47'
    sP = ['s[48:49]', 's[50:51]', 's[52:53]']; sPn = [48, 50, 52]
    sEx = 's[54:55]'
    sPC = 's[56:57]'
    ST0 = 64
    names = ['start', 'karg', 'Kiss', 'Viss', 'qarr', 'smax', 'Varr', 'opub', 'ogath', 'wo', 'rpub', 'rgath', 'end']
    gnames = {'x': 'Kiss', 'wq': 'Viss', 'qpub': 'qarr', 'hpub': 'smax', 'ack': 'Varr'}
    def stamp(n):
        if stamps:
            k = names.index(gnames.get(n, n)); e('s_memrealtime s[%d:%d]' % (ST0 + 2 * k, ST0 + 2 * k + 1))
    def tagcalc():
        e('s_add_u32 %s, %s, 0x5b3d27c5' % (sT, sT))
        e('s_cmp_eq_u32 %s, 0' % sT)
        e('s_cselect_b32 %s, 0x5b3d27c5, %s' % (sT, sT))
        for k in range(4): e('s_bfe_u32 %s, %s, 0x%x' % (sTb[k], sT, 0x80000 | (8 * k)))
        e('s_getreg_b32 %s, hwreg(HW_REG_XCC_ID, 0, 4)' % sA)
        if force_slow: e('s_and_b32 %s, s2, 8' % sA)
        e('s_and_b32 %s, %s, 0xf0' % (sTq, sT))
        e('s_or_b32 %s, %s, %s' % (sTq, sTq, sA))
    def masks(vM, t0, t1):
        e('v_and_b32 %s, 1, v0' % v(t0))
        e('v_lshlrev_b32 %s, 4, %s' % (v(t0), v(t0)))
        e('v_mov_b32 %s, 0xffff' % v(t1))
        e('v_lshlrev_b32 %s, %s, %s' % (v(t1), v(t0), v(t1)))
        e('v_bfe_u32 %s, v0, 1, 2' % v(t0))
        for r in range(4):
            e('v_cmp_eq_u32 vcc, %d, %s' % (r, v(t0)))
            e('v_cndmask_b32 %s, 0, %s, vcc' % (v(vM + r), v(t1)))

    vPF = 1
    e('s_load_dwordx16 s[4:19], s[0:1], 0')
    e('s_load_dwordx8 s[20:27], s[0:1], 64')
    e('s_load_dwordx2 s[28:29], s[0:1], 96')
    if stamps:
        for k in range(1, len(names)): e('s_mov_b32 s%d, 0' % (ST0 + 2 * k))
    stamp('start')
    e('s_cmpk_ge_u32 s2, 0x100')
    e('s_cbranch_scc1 L_end')
    if codepf:
        e('s_getpc_b64 %s' % sPC)
        lab('L_pc')
        e('v_lshlrev_b32 v1, 7, v0')
        e('v_min_u32 v1, L_last-L_pc, v1')
        e('global_load_dword v1, v1, %s %s' % (sPC, cpf))
    e('s_and_b32 %s, s2, 7' % sH)
    e('s_lshr_b32 %s, s2, 3' % sC)
    if True:
        e('v_subrev_u32 v0, 64, v0'); e('v_min_u32 v2, 0x13f, v0'); e('v_bfi_b32 v0, 63, v0, v2')
    e('v_readfirstlane_b32 %s, v0' % sW)
    e('v_bfe_u32 v2, v0, 3, 3')
    e('v_and_b32 v3, 7, v0')
    e('s_lshr_b32 %s, %s, 6' % (sW, sW))
    e('s_cmp_eq_u32 %s, 4' % sW)
    e('s_cbranch_scc0 L_A')
    gXs = 4
    gWq = 8
    gW1 = 64
    gA = 92
    gSel = 116
    gM = 124
    gP = 128
    gXh = 136
    gD = 144
    gt = list(range(152, 168))
    a_wq, a_xs, a_w1, a_b1, l_ = gt[0], gt[1], gt[2], gt[3], gt[4]
    if gprio: e('s_setprio %d' % gprio)
    e('s_lshr_b32 %s, %s, 3' % (sA, sC))
    e('s_mul_i32 %s, %s, 112' % (sFb, sA))
    e('v_mad_u32_u24 %s, v2, 14, %s' % (v(gt[5]), sFb))
    e('s_and_b32 %s, %s, 7' % (sA, sC))
    e('s_lshl3_add_u32 %s, %s, %s' % (sA, sH, sA))
    e('s_lshl_b32 %s, %s, 7' % (sA, sA))
    e('v_lshl_add_u32 %s, v3, 4, %s' % (v(a_wq), sA))
    e('v_lshl_add_u32 %s, %s, 13, %s' % (v(a_wq), v(gt[5]), v(a_wq)))
    e('v_and_b32 %s, 63, v0' % v(l_))
    e('v_min_u32 %s, 55, %s' % (v(a_xs), v(l_)))
    e('v_lshlrev_b32 %s, 4, %s' % (v(a_xs), v(a_xs)))
    masks(gM, gt[6], gt[7])
    e('s_mov_b32 %s, 0xffff0000' % sHi)
    e('v_mov_b32 %s, 0x0c0c0c0c' % v(gt[6]))
    e('s_mov_b32 %s, 0x01000100' % sA); e('s_mov_b32 %s, 0x03020302' % sB)
    for r in range(4):
        e('v_bfi_b32 %s, %s, %s, %s' % (v(gSel + r), v(gM + r), sA, v(gt[6])))
        e('v_bfi_b32 %s, %s, %s, %s' % (v(gSel + 4 + r), v(gM + r), sB, v(gt[6])))
    e('v_cmp_gt_u32 %s, 56, %s' % (sEx, v(l_)))
    e('s_waitcnt lgkmcnt(0)')
    stamp('karg')
    e('global_load_dwordx4 %s, %s, %s %s' % (vr(gXs, 4), v(a_xs), sX, small))
    for t in range(14):
        e('global_load_dwordx4 %s, %s, %s%s' % (vr(gWq + 4 * t, 4), v(a_wq), sWq, NT))
        if t < 13: e('v_add_u32 %s, 0x2000, %s' % (v(a_wq), v(a_wq)))
        if t == 0: e('s_load_dword %s, %s, %d' % (sT, sWs, WS_E))
        if t == 1:
            e('s_mul_i32 %s, s2, 2341' % sB); e('s_lshr_b32 %s, %s, 16' % (sB, sB)); e('s_mul_i32 %s, %s, 28' % (sA, sB))
        if t == 2:
            e('s_sub_u32 %s, s2, %s' % (sA, sA)); e('s_lshl3_add_u32 %s, %s, %s' % (sKV, sA, sB)); e('s_mul_i32 %s, %s, 56' % (sB, sB))
        if t == 3:
            e('v_mad_u32_u24 %s, v2, 7, %s' % (v(a_b1), sB)); e('s_lshl_b32 %s, %s, 7' % (sA, sA))
        if t == 4:
            e('v_lshl_add_u32 %s, v3, 4, %s' % (v(a_w1), sA)); e('s_movk_i32 %s, 3584' % sA)
        if t == 5:
            e('v_mad_u32_u24 %s, %s, %s, %s' % (v(a_w1), v(a_b1), sA, v(a_w1)))
    e('s_cmp_lt_u32 %s, 28' % sC)
    e('s_cbranch_scc0 L_Gnow1')
    for t in range(7):
        e('global_load_dwordx4 %s, %s, %s offset:%d%s' % (vr(gW1 + 4 * t, 4), v(a_w1), sW1, 3584 * (t & 1), NT))
        if t & 1: e('v_add_u32 %s, %d, %s' % (v(a_w1), 2 * 3584, v(a_w1)))
    e('s_branch L_Gj')
    lab('L_Gnow1')
    e('s_sub_u32 %s, s2, 224' % sA); e('s_lshl_b32 %s, %s, 14' % (sA, sA)); e('s_add_u32 %s, %s, %d' % (sA, sA, WS_R))
    e('v_lshl_add_u32 %s, %s, 7, %s' % (v(a_w1), v(l_), sA))
    e('v_add_u32 %s, 0x2000, %s' % (v(a_b1), v(a_w1)))
    if pretouch:
        e('global_load_dword %s, %s, %s %s' % (v(gW1), v(a_w1), sWs, pretouch.replace('_', ' ')))
        e('global_load_dword %s, %s, %s %s' % (v(gW1 + 1), v(a_b1), sWs, pretouch.replace('_', ' ')))
    else:
        e('global_load_dword %s, %s, %s' % (v(gW1), v(a_xs), sX)); e('global_load_dword %s, %s, %s' % (v(gW1 + 1), v(a_xs), sX))
    e('global_load_dword %s, %s, %s %s' % (v(gW1 + 2), v(a_xs), sB2, small))
    e('global_load_dword %s, %s, %s %s' % (v(gW1 + 3), v(a_xs), sOut, small))
    for t in range(3): e('global_load_dword %s, %s, %s' % (v(gW1 + 4 + t), v(a_xs), sX))
    e('v_mov_b32 %s, 0' % v(a_b1))
    lab('L_Gj')
    if bar0 == 'iss': e('s_barrier')
    e('s_waitcnt vmcnt(21)')
    if bar0 == 'x': e('s_barrier')
    stamp('x')
    xs = gA
    for i in range(4):
        e('v_lshlrev_b32 %s, 16, %s' % (v(xs + 2 * i), v(gXs + i)))
        e('v_and_b32 %s, %s, %s' % (v(xs + 2 * i + 1), sHi, v(gXs + i)))
    ts, tm, tv = gt[6], gt[8], gt[10]
    xd = gA + 8
    def wave_sum(r, dst):
        for m in ['row_shr:1', 'row_shr:2', 'row_shr:4', 'row_shr:8']:
            e('v_add_f32_dpp %s, %s, %s %s %s bound_ctrl:0' % (v(r), v(r), v(r), m, FULL))
        e('v_add_f32_dpp %s, %s, %s row_bcast:15 row_mask:0xa bank_mask:0xf' % (v(r), v(r), v(r)))
        e('v_add_f32_dpp %s, %s, %s row_bcast:31 row_mask:0xc bank_mask:0xf' % (v(r), v(r), v(r)))
        e('v_readlane_b32 %s, %s, 63' % (dst, v(r)))
    e('v_pk_add_f32 %s, %s, %s' % (vr(xd, 2), vr(xs, 2), vr(xs + 2, 2)))
    e('v_pk_add_f32 %s, %s, %s' % (vr(xd + 2, 2), vr(xs + 4, 2), vr(xs + 6, 2)))
    e('v_pk_add_f32 %s, %s, %s' % (vr(xd, 2), vr(xd, 2), vr(xd + 2, 2)))
    e('v_add_f32 %s, %s, %s' % (v(ts), v(xd), v(xd + 1)))
    e('v_cndmask_b32 %s, 0, %s, %s' % (v(ts), v(ts), sEx))
    e('v_mov_b32 %s, %s' % (v(tv), hx(f2u(1.0 / 448))))
    wave_sum(ts, sA)
    e('v_mul_f32 %s, %s, %s' % (v(tm), sA, v(tv)))
    for i in range(4): e('v_pk_add_f32 %s, %s, %s op_sel_hi:[1,0] neg_lo:[0,1] neg_hi:[0,1]' % (vr(xd + 2 * i, 2), vr(xs + 2 * i, 2), vr(tm, 2)))
    e('v_pk_mul_f32 %s, %s, %s' % (vr(ts, 2), vr(xd, 2), vr(xd, 2)))
    for i in range(1, 4): e('v_pk_fma_f32 %s, %s, %s, %s' % (vr(ts, 2), vr(xd + 2 * i, 2), vr(xd + 2 * i, 2), vr(ts, 2)))
    e('v_add_f32 %s, %s, %s' % (v(ts), v(ts), v(ts + 1)))
    e('v_cndmask_b32 %s, 0, %s, %s' % (v(ts), v(ts), sEx))
    e('v_cvt_pk_bf16_f32 %s, %s, %s' % (v(tm), v(tm), v(tm)))
    e('v_and_b32 %s, %s, %s' % (v(tm), sHi, v(tm)))
    dops = []
    for i in range(4): dops.append('v_pk_add_f32 %s, %s, %s op_sel_hi:[1,0] neg_lo:[0,1] neg_hi:[0,1]' % (vr(xd + 2 * i, 2), vr(xs + 2 * i, 2), vr(tm, 2)))
    for i in range(4): dops.append('v_cvt_pk_bf16_f32 %s, %s, %s' % (v(xs + i), v(xd + 2 * i), v(xd + 2 * i + 1)))
    for i in range(4):
        dops.append('v_lshlrev_b32 %s, 16, %s' % (v(xd + 2 * i), v(xs + i)))
        dops.append('v_and_b32 %s, %s, %s' % (v(xd + 2 * i + 1), sHi, v(xs + i)))
    red = ['v_add_f32_dpp %s, %s, %s %s %s bound_ctrl:0' % (v(ts), v(ts), v(ts), m, FULL) for m in ['row_shr:1', 'row_shr:2', 'row_shr:4', 'row_shr:8']]
    red += ['v_add_f32_dpp %s, %s, %s row_bcast:15 row_mask:0xa bank_mask:0xf' % (v(ts), v(ts), v(ts)),
            'v_add_f32_dpp %s, %s, %s row_bcast:31 row_mask:0xc bank_mask:0xf' % (v(ts), v(ts), v(ts)),
            'v_readlane_b32 %s, %s, 63' % (sA, v(ts))]
    for r_ in red:
        e(r_); e(dops.pop(0)); e(dops.pop(0))
    e('v_mul_f32 %s, %s, %s' % (v(tv), sA, v(tv)))
    e('v_cvt_pk_bf16_f32 %s, %s, %s' % (v(tv), v(tv), v(tv)))
    e('v_and_b32 %s, %s, %s' % (v(tv), sHi, v(tv)))
    e('v_add_f32 %s, %s, %s' % (v(tv), hx(f2u(1e-5)), v(tv)))
    e('v_cvt_pk_bf16_f32 %s, %s, %s' % (v(tv), v(tv), v(tv)))
    e('v_and_b32 %s, %s, %s' % (v(tv), sHi, v(tv)))
    e('v_sqrt_f32 %s, %s' % (v(tv), v(tv)))
    e(dops.pop(0))
    e('v_cvt_pk_bf16_f32 %s, %s, %s' % (v(tv), v(tv), v(tv)))
    e('v_and_b32 %s, %s, %s' % (v(tv), sHi, v(tv)))
    e('v_rcp_f32 %s, %s' % (v(tv), v(tv)))
    e(dops.pop(0))
    assert not dops
    for i in range(4): e('v_pk_mul_f32 %s, %s, %s op_sel_hi:[1,0]' % (vr(xd + 2 * i, 2), vr(xd + 2 * i, 2), vr(tv, 2)))
    for i in range(4): e('v_cvt_pk_bf16_f32 %s, %s, %s' % (v(xs + i), v(xd + 2 * i), v(xd + 2 * i + 1)))
    e('v_lshlrev_b32 %s, 4, %s' % (v(gt[6]), v(l_)))
    e('ds_write_b128 %s, %s offset:%d' % (v(gt[6]), vr(xs, 4), XN))
    e('v_lshlrev_b32 %s, 1, %s' % (v(gt[7]), v(gt[5])))
    e('v_lshlrev_b32 %s, 1, %s' % (v(gt[6]), v(a_b1)))
    for k in range(3): e('ds_read2_b32 %s, %s offset0:%d offset1:%d' % (vr(gP + 2 * k, 2), v(gt[7]), XN // 4 + 2 * k, XN // 4 + 2 * k + 1))
    e('ds_read_b32 %s, %s offset:%d' % (v(gP + 6), v(gt[7]), XN + 24))
    for t in range(7): e('ds_read_u16 %s, %s offset:%d' % (v(gXh + t), v(gt[6]), XN + 2 * t))
    e('s_waitcnt lgkmcnt(0)')
    def ga(t): return gA + 4 * (t % 6)
    for k in range(7):
        for r in range(4): e('v_perm_b32 %s, %s, %s, %s' % (v(ga(2 * k) + r), v(gP + k), v(gP + k), v(gSel + r)))
        for r in range(4): e('v_perm_b32 %s, %s, %s, %s' % (v(ga(2 * k + 1) + r), v(gP + k), v(gP + k), v(gSel + 4 + r)))
        if k >= 1:
            for t in (2 * k - 2, 2 * k - 1):
                e('s_waitcnt vmcnt(%d)' % (20 - t))
                e('v_mfma_f32_16x16x32_bf16 %s, %s, %s, %s' % (vr(gD, 4), vr(ga(t), 4), vr(gWq + 4 * t, 4), '0' if t == 0 else vr(gD, 4)))
        if k == 0: tagcalc()
    for t in (12, 13):
        e('s_waitcnt vmcnt(%d)' % (20 - t))
        e('v_mfma_f32_16x16x32_bf16 %s, %s, %s, %s' % (vr(gD, 4), vr(ga(t), 4), vr(gWq + 4 * t, 4), vr(gD, 4)))
    stamp('wq')
    e('s_lshl_b32 %s, %s, 13' % (sA, sH)); e('s_lshl_b32 %s, %s, 8' % (sB, sC)); e('s_add_u32 %s, %s, %s' % (sA, sA, sB))
    e('s_add_u32 %s, %s, %d' % (sA, sA, WS_Q))
    e('v_lshl_add_u32 %s, v3, 4, %s' % (v(gt[6]), sA))
    e('v_and_b32 %s, 16, v0' % v(gt[7]))
    e('v_lshl_add_u32 %s, %s, 3, %s' % (v(gt[6]), v(gt[7]), v(gt[6])))
    e('v_mov_b32 %s, 0xff' % v(gt[7]))
    for r in range(4): e('v_permlane32_swap_b32 %s, %s' % (v(gD + r), v(gD + 4 + r)))
    for r in range(4): e('v_add_f32_dpp %s, %s, %s row_ror:8 %s' % (v(gD + r), v(gD + 4 + r), v(gD + r), FULL))
    for r in range(4): e('v_bfi_b32 %s, %s, %s, %s' % (v(gD + r), v(gt[7]), sTq if r == 0 else sTb[r], v(gD + r)))
    e('s_mov_b64 exec, 0x00ff00ff')
    e('global_store_dwordx4 %s, %s, %s %s' % (v(gt[6]), vr(gD, 4), sWs, pst))
    e('s_mov_b64 exec, -1')
    stamp('qpub')
    e('s_cmp_lt_u32 %s, 28' % sC)
    e('s_cbranch_scc0 L_Gend')
    gE = gWq
    for t in range(7):
        for r in range(4): e('v_perm_b32 %s, %s, %s, %s' % (v(ga(t) + r), v(gXh + t), v(gXh + t), v(gSel + r)))
        if t >= 1:
            e('s_waitcnt vmcnt(%d)' % (8 - t))
            e('v_mfma_f32_16x16x32_bf16 %s, %s, %s, %s' % (vr(gE, 4), vr(ga(t - 1), 4), vr(gW1 + 4 * (t - 1), 4), '0' if t == 1 else vr(gE, 4)))
    e('s_lshl_b32 %s, %s, 8' % (sA, sKV)); e('s_add_u32 %s, %s, %d' % (sA, sA, WS_H))
    e('s_waitcnt vmcnt(1)')
    e('v_mfma_f32_16x16x32_bf16 %s, %s, %s, %s' % (vr(gE, 4), vr(ga(6), 4), vr(gW1 + 24, 4), vr(gE, 4)))
    e('v_lshl_add_u32 %s, v3, 5, %s' % (v(gt[6]), sA))
    e('v_and_b32 %s, 16, v0' % v(gt[8]))
    e('v_add_u32 %s, %s, %s' % (v(gt[6]), v(gt[8]), v(gt[6])))
    for r in range(4): e('v_permlane32_swap_b32 %s, %s' % (v(gE + r), v(gE + 4 + r)))
    for r in range(4): e('v_add_f32_dpp %s, %s, %s row_ror:8 %s' % (v(gE + r), v(gE + 4 + r), v(gE + r), FULL))
    for r in range(4): e('v_bfi_b32 %s, %s, %s, %s' % (v(gE + r), v(gt[7]), sTb[r], v(gE + r)))
    e('s_mov_b64 exec, 0x00ff00ff')
    e('global_store_dwordx4 %s, %s, %s %s' % (v(gt[6]), vr(gE, 4), sWs, pst))
    e('s_mov_b64 exec, -1')
    lab('L_Gend')
    stamp('hpub')
    e('s_barrier')
    if ackst: e('s_waitcnt vmcnt(0)'); stamp('ack')
    e('s_barrier')
    if stamps:
        e('s_barrier'); e('s_barrier'); e('s_branch L_fin')
    else: e('s_endpgm')

    vM = 4
    vFF = 8
    aK = 10
    aV = 14
    aQ, aWo, aW2, aO, aG, aR = 16, 17, 18, 19, 20, 21
    l_qw, l_ml, l_or, l_gw, l_gr, l_mr, l_hv = 22, 23, 24, 25, 26, 27, 28
    l_ow = 30
    l_qr = 32
    t_j, t_s, t_l, tc, td = 36, 37, 38, 39, 40
    aH, vTh, vHp, vB1 = 41, 42, 43, 9
    aG0 = 28
    vZ = 44
    vKk = 48
    vVv = 80
    vWo = 112
    vW2 = 128
    vG = 136
    vD = 152
    vAcc = 160
    vFl = 164
    vQB = None; vA = None
    NV = 168 + 32
    vQB = 168; vA = 184
    DP = ['quad_perm:[1,0,3,2]', 'quad_perm:[2,3,0,1]', 'row_half_mirror']
    lab('L_A')
    e('s_lshl_b32 %s, %s, 22' % (sKV, sH))
    e('s_lshl_b32 %s, %s, 15' % (sA, sC))
    e('s_add_u32 %s, %s, %s' % (sKV, sKV, sA))
    e('s_lshl_b32 %s, %s, 11' % (sA, sW))
    e('s_add_u32 %s, %s, %s' % (sKV, sKV, sA))
    e('s_add_u32 %s, %s, 0x300000' % (sKV, sKV))
    e('s_and_b32 %s, %s, 3' % (sB, sC))
    e('s_lshl_b32 %s, %s, 7' % (sB, sB))
    e('s_add_u32 %s, %s, %s' % (sA, sKV, sB))
    e('v_and_b32 %s, 48, v0' % v(t_s))
    e('v_bfe_u32 %s, v0, 2, 2' % v(tc))
    e('v_lshl_add_u32 %s, %s, 9, %s' % (v(aK), v(tc), v(t_s)))
    e('v_and_b32 %s, 2, v0' % v(tc))
    e('v_lshl_add_u32 %s, %s, 12, %s' % (v(aK), v(tc), v(aK)))
    e('v_and_b32 %s, 1, v0' % v(td))
    e('v_lshl_add_u32 %s, %s, 6, %s' % (v(aK), v(td), v(aK)))
    e('v_add_u32 %s, %s, %s' % (v(aK), sA, v(aK)))
    for t in range(1, 4): e('v_xor_b32 %s, 0x%x, %s' % (v(aK + t), t << 7, v(aK)))
    e('v_and_b32 %s, 15, v0' % v(t_j))
    e('s_and_b32 %s, %s, 1' % (sA, sC)); e('s_lshl_b32 %s, %s, 8' % (sA, sA)); e('s_add_u32 %s, %s, %s' % (sA, sA, sKV))
    e('v_lshlrev_b32 %s, 5, %s' % (v(aV), v(t_s)))
    e('v_lshl_add_u32 %s, %s, 4, %s' % (v(aV), v(t_j), v(aV)))
    e('v_add_u32 %s, %s, %s' % (v(aV), sA, v(aV)))
    e('v_xor_b32 %s, 0x100, %s' % (v(aV + 1), v(aV)))
    e('s_lshl_b32 %s, %s, 17' % (sA, sH)); e('s_lshl_b32 %s, %s, 7' % (sB, sC)); e('s_add_u32 %s, %s, %s' % (sA, sA, sB))
    e('s_add_u32 %s, %s, %d' % (sA, sA, WS_O))
    e('v_lshrrev_b32 %s, 3, v0' % v(tc))
    e('v_lshl_add_u32 %s, v3, 4, %s' % (v(aO), sA))
    e('v_lshl_add_u32 %s, %s, 12, %s' % (v(aO), v(tc), v(aO)))
    e('s_lshl_b32 %s, %s, 13' % (sA, sH)); e('s_lshl_b32 %s, %s, 9' % (sB, sW)); e('s_add_u32 %s, %s, %s' % (sA, sA, sB))
    e('s_add_u32 %s, %s, %d' % (sA, sA, WS_Q))
    e('v_and_b32 %s, 31, v0' % v(tc))
    e('v_lshl_add_u32 %s, %s, 4, %s' % (v(aQ), v(tc), sA))
    e('v_and_b32 %s, 32, v0' % v(tc))
    e('v_lshl_add_u32 %s, %s, 7, %s' % (v(aQ), v(tc), v(aQ)))
    for k in range(4): e('v_mov_b32 %s, 0' % v(vZ + k))
    e('s_waitcnt lgkmcnt(0)')
    stamp('karg')
    e('s_load_dword %s, %s, %d' % (sT, sWs, WS_E))
    sPK = 's[58:59]'
    e('s_add_u32 s58, s6, 0x4000'); e('s_addc_u32 s59, s7, 0')
    e('s_barrier')
    seq = []
    def gapf():
        for _ in range(gap): e('s_mov_b32 %s, 0' % sNU)
    def kload(i):
        o, t = i >> 2, i & 3
        e('global_load_dwordx4 %s, %s, %s%s' % (vr(vKk + 16 * o + 4 * t, 4), v(aK + t), sK if o == 0 else sPK, NT)); seq.append('k%d' % i); gapf()
    def vload(i):
        r, hf = i >> 1, i & 1
        e('global_load_dwordx4 %s, %s, %s%s' % (vr(vVv + 8 * r + 4 * hf, 4), v(aV + hf), sV if r == 0 else sP[r - 1], NT)); seq.append('v%d' % i); gapf()
    def qpoll():
        e('global_load_dwordx4 %s, %s, %s %s' % (vr(vG, 4), v(aQ), sWs, pld))
        e('global_load_dwordx4 %s, %s, %s offset:2048 %s' % (vr(vG + 4, 4), v(aQ), sWs, pld))
    def woissue():
        e('global_load_dword %s, %s, %s %s' % (v(vHp), v(aH), sWs, pld)); seq.append('h')
        if preo: e('global_load_dword %s, %s, %s %s' % (v(29), v(aG0), sWs, preo.replace('_', ' '))); seq.append('preo')
        for t in range(2):
            e('global_load_dwordx4 %s, %s, %s offset:%d%s' % (vr(vW2 + 4 * t, 4), v(aW2), sW2, 896 * t, NT)); seq.append('w2_%d' % t); gapf()
        for t in range(4):
            e('global_load_dwordx4 %s, %s, %s offset:%d%s' % (vr(vWo + 4 * t, 4), v(aWo), sWo, 896 * t, NT)); seq.append('wo_%d' % t); gapf()
    def waitfor(name): e('s_waitcnt vmcnt(%d)' % (len(seq) - 1 - seq.index(name)))
    for i in range(kfirst): kload(i)
    for r in range(1, 4):
        e('s_add_u32 s%d, s8, 0x%x' % (sPn[r - 1], 0x2000 * r)); e('s_addc_u32 s%d, s9, 0' % (sPn[r - 1] + 1))
    stamp('Kiss')
    e('v_and_b32 %s, 63, v0' % v(t_l))
    e('s_cmp_lt_u32 %s, 28' % sC)
    e('s_cselect_b32 %s, -1, 0' % sMF)
    e('s_lshl_b32 %s, %s, 9' % (sA, sH))
    e('s_and_b32 %s, %s, 8' % (sB, sC)); e('s_lshl_b32 %s, %s, 5' % (sB, sB)); e('s_add_u32 %s, %s, %s' % (sA, sA, sB))
    e('s_and_b32 %s, %s, 16' % (sB, sC)); e('s_lshl3_add_u32 %s, %s, %s' % (sA, sB, sA))
    e('s_and_b32 %s, %s, 3' % (sB, sC)); e('s_lshl_b32 %s, %s, 5' % (sB, sB)); e('s_add_u32 %s, %s, %s' % (sA, sA, sB))
    e('s_and_b32 %s, %s, 4' % (sB, sC)); e('s_add_u32 %s, %s, %s' % (sA, sA, sB))
    e('s_mul_i32 %s, %s, 896' % (sA, sA))
    e('s_lshl_b32 %s, %s, 4' % (sB, sW))
    e('v_add_u32 %s, %s, %s' % (v(tc), sB, v(t_j)))
    e('v_min_u32 %s, 55, %s' % (v(tc), v(tc)))
    e('v_lshlrev_b32 %s, 4, %s' % (v(tc), v(tc)))
    e('v_mul_u32_u24 %s, %d, %s' % (v(td), 896 * 2 // 16, v(t_s)))
    e('v_lshl_add_u32 %s, %s, 2, %s' % (v(aWo), v(td), v(tc)))
    e('v_add_u32 %s, %s, %s' % (v(aWo), sA, v(aWo)))
    e('s_mul_i32 %s, s2, %d' % (sA, 8 * 896))
    e('v_add3_u32 %s, %s, %s, %s' % (v(aW2), v(td), v(tc), sA))
    e('v_and_b32 %s, %s, %s' % (v(aW2), sMF, v(aW2)))
    e('s_lshl_b32 %s, %s, 11' % (sA, sC)); e('s_lshl_b32 %s, %s, 5' % (sB, sH)); e('s_add_u32 %s, %s, %s' % (sA, sA, sB))
    e('s_and_b32 %s, %s, %s' % (sA, sA, sMF)); e('s_add_u32 %s, %s, %d' % (sA, sA, WS_H))
    e('v_lshl_add_u32 %s, v3, 8, %s' % (v(aH), sA))
    e('v_lshl_add_u32 %s, v2, 2, %s' % (v(aH), v(aH)))
    e('s_lshl_b32 %s, s2, 4' % sA); e('s_and_b32 %s, %s, %s' % (sA, sA, sMF))
    e('v_lshl_add_u32 %s, v2, 1, %s' % (v(vB1), sA))
    e('s_lshl_b32 %s, %s, 17' % (sA, sH)); e('s_lshl_b32 %s, %s, 12' % (sB, sC)); e('s_add_u32 %s, %s, %s' % (sA, sA, sB))
    e('s_add_u32 %s, %s, %d' % (sA, sA, WS_O))
    e('v_lshl_add_u32 %s, v0, 4, %s' % (v(aG), sA))
    e('v_mov_b32 %s, %s' % (v(aG0), v(aG)))
    e('s_lshl_b32 %s, s2, 6' % sA); e('s_lshl_b32 %s, %s, 17' % (sB, sW)); e('s_add_u32 %s, %s, %s' % (sA, sA, sB))
    e('s_add_u32 %s, %s, %d' % (sA, sA, WS_R))
    e('v_and_b32 %s, 3, v0' % v(tc))
    e('v_lshl_add_u32 %s, %s, 4, %s' % (v(aR), v(tc), sA))
    e('v_and_b32 %s, 28, v0' % v(tc))
    e('v_lshl_add_u32 %s, %s, 12, %s' % (v(aR), v(tc), v(aR)))
    masks(vM, tc, td)
    e('v_mov_b32 %s, 0xff' % v(vFF))
    e('s_mov_b32 %s, 0xffff0000' % sHi)
    e('s_mov_b32 %s, %s' % (sCexp, hx(f2u(math.log2(math.e) / 16.0))))
    e('s_lshl_b32 %s, %s, 8' % (sA, sW))
    e('v_lshl_add_u32 %s, v3, 4, %s' % (v(l_qw), sA))
    e('v_and_b32 %s, 8, v0' % v(tc)); e('v_add_u32 %s, %s, %s' % (v(l_qw), v(l_qw), v(tc)))
    e('v_and_b32 %s, 16, v0' % v(td)); e('v_lshl_add_u32 %s, %s, 3, %s' % (v(l_qw), v(td), v(l_qw)))
    e('v_bfe_u32 %s, v0, 5, 1' % v(td)); e('v_lshl_add_u32 %s, %s, 2, %s' % (v(l_qw), v(td), v(l_qw)))
    e('s_and_b32 %s, %s, 2' % (sA, sW)); e('s_lshl_b32 %s, %s, 6' % (sA, sA))
    e('v_xor_b32 %s, %s, %s' % (v(l_qw), sA, v(l_qw)))
    e('v_mul_u32_u24 %s, %d, %s' % (v(l_qr), (512 + 128) // 8, v(tc)))
    e('v_and_b32 %s, 1, v0' % v(td)); e('v_lshl_add_u32 %s, %s, 6, %s' % (v(l_qr), v(td), v(l_qr)))
    e('v_add_u32 %s, %s, %s' % (v(l_qr), v(l_qr), v(t_s)))
    e('s_and_b32 %s, %s, 3' % (sA, sC)); e('s_lshl_b32 %s, %s, 7' % (sA, sA))
    e('v_xor_b32 %s, %s, %s' % (v(l_qr), sA, v(l_qr)))
    for t in range(1, 4): e('v_xor_b32 %s, 0x%x, %s' % (v(l_qr + t), t << 7, v(l_qr)))
    e('s_lshl_b32 %s, %s, 2' % (sA, sW))
    e('v_lshl_add_u32 %s, %s, 2, %s' % (v(l_ml), v(tc), sA))
    e('s_lshl_b32 %s, %s, 1' % (sA, sW)); e('s_and_b32 %s, %s, 1' % (sB, sC)); e('s_add_u32 %s, %s, %s' % (sA, sA, sB)); e('s_lshl_b32 %s, %s, 10' % (sA, sA))
    e('v_lshl_add_u32 %s, %s, 4, %s' % (v(l_ow), v(t_l), sA))
    e('v_xor_b32 %s, 0x400, %s' % (v(l_ow + 1), v(l_ow)))
    e('v_lshlrev_b32 %s, 3, v0' % v(l_or))
    e('s_and_b32 %s, %s, 1' % (sA, sW)); e('s_lshl_b32 %s, %s, 5' % (sA, sA))
    e('v_mov_b32 %s, %s' % (v(l_mr), sA))
    e('v_lshrrev_b32 %s, 3, v0' % v(tc))
    e('v_mul_u32_u24 %s, 144, %s' % (v(l_gw), v(tc)))
    e('v_lshl_add_u32 %s, v3, 4, %s' % (v(l_gw), v(l_gw)))
    e('v_mul_u32_u24 %s, 144, v3' % v(l_gr))
    e('v_lshl_add_u32 %s, v2, 4, %s' % (v(l_gr), v(l_gr)))
    e('s_waitcnt lgkmcnt(0)')
    tagcalc()
    e('v_and_b32 %s, 24, v0' % v(tc))
    e('v_bfe_u32 %s, %s, %s, 8' % (v(vTh), sT, v(tc)))
    e('s_mov_b32 %s, %d' % (sCnt, spin_cap))
    e('v_mov_b32 %s, 0' % v(vFl))
    e('s_barrier')
    for i in range(kfirst, 8): kload(i)
    e('global_load_ushort %s, %s, %s %s' % (v(vB1), v(vB1), sB1, small)); seq.append('b1')
    if prewrite: e('global_store_dwordx4 %s, %s, %s' % (v(aO), vr(vZ, 4), sWs)); seq.append('pw')
    for i in range(pollpos): vload(i)
    if pollgate: waitfor(pollgate)
    qpoll(); seq += ['q0', 'q1']
    for i in range(pollpos, 8): vload(i)
    stamp('Viss')
    if wopos == 'afterV': woissue()
    elif wopos in seq: waitfor(wopos); woissue()
    waitfor('q1')
    stamp('qarr')
    lab('L_qchk')
    for k in range(8): e('v_xor_b32 %s, %s, %s' % (v(vG + k), sTq if (k & 3) == 0 else sTb[k & 3], v(vG + k)))
    e('v_or3_b32 %s, %s, %s, %s' % (v(tc), v(vG + 1), v(vG + 2), v(vG + 3)))
    e('v_or3_b32 %s, %s, %s, %s' % (v(tc), v(tc), v(vG + 5), v(vG + 6)))
    e('v_or_b32 %s, %s, %s' % (v(td), v(vG), v(vG + 4)))
    e('v_or3_b32 %s, %s, %s, %s' % (v(vZ), v(tc), v(vG + 7), v(td)))
    e('v_and_b32 %s, %s, %s' % (v(vZ), v(vFF), v(vZ)))
    e('v_cmp_ne_u32 vcc, 0, %s' % v(vZ))
    e('s_cbranch_vccnz L_qslow')
    lab('L_qok')
    e('v_pk_add_f32 %s, %s, %s' % (vr(vG, 2), vr(vG, 2), vr(vG + 4, 2)))
    e('v_pk_add_f32 %s, %s, %s' % (vr(vG + 2, 2), vr(vG + 2, 2), vr(vG + 6, 2)))
    e('ds_write_b32 %s, %s offset:%d' % (v(l_ml), v(vFl), FL))
    e('v_permlane32_swap_b32 %s, %s' % (v(vG), v(vG + 2)))
    e('v_permlane32_swap_b32 %s, %s' % (v(vG + 1), v(vG + 3)))
    e('v_pk_add_f32 %s, %s, %s' % (vr(vG, 2), vr(vG, 2), vr(vG + 2, 2)))
    e('v_cvt_pk_bf16_f32 %s, %s, %s' % (v(vG), v(vG), v(vG + 1)))
    e('ds_write_b32 %s, %s offset:%d' % (v(l_qw), v(vG), QB))
    e('s_waitcnt lgkmcnt(0)')
    e('s_barrier')
    for t in range(4): e('ds_read_b128 %s, %s offset:%d' % (vr(vQB + 4 * t, 4), v(l_qr + t), QB))
    e('ds_read_b128 %s, %s offset:%d' % (vr(vFl, 4), v(vZ + 1), FL))
    if wopos == 'bar1': woissue()
    for t in range(4):
        e('s_waitcnt lgkmcnt(%d)' % (4 - t))
        for o in range(2):
            e('v_mfma_f32_16x16x32_bf16 %s, %s, %s, %s' % (vr(vD + 4 * o, 4), vr(vKk + 16 * o + 4 * t, 4), vr(vQB + 4 * t, 4), '0' if t == 0 else vr(vD + 4 * o, 4)))
    e('s_waitcnt lgkmcnt(0)')
    e('v_or3_b32 %s, %s, %s, %s' % (v(vFl), v(vFl), v(vFl + 1), v(vFl + 2)))
    e('v_or_b32 %s, %s, %s' % (v(vFl), v(vFl), v(vFl + 3)))
    e('v_add_u32 %s, %s, %s' % (v(aO), v(aO), v(vFl)))
    e('v_add_u32 %s, %s, %s' % (v(aG), v(aG), v(vFl)))
    e('v_readfirstlane_b32 %s, %s' % (sNU, v(vFl)))
    sc = vG; m0, m1 = vG + 4, vG + 5
    for r in range(4): e('v_mov_b32_dpp %s, %s quad_perm:[1,1,3,3] %s' % (v(sc + r), v(vD + 2 * r + 1), FULL))
    for r in range(4): e('v_add_f32_dpp %s, %s, %s quad_perm:[0,0,2,2] %s' % (v(sc + r), v(vD + 2 * r), v(sc + r), FULL))
    e('v_cvt_pk_bf16_f32 %s, %s, %s' % (v(sc + 1), v(sc), v(sc + 1)))
    e('v_cvt_pk_bf16_f32 %s, %s, %s' % (v(sc + 3), v(sc + 2), v(sc + 3)))
    e('v_lshlrev_b32 %s, 16, %s' % (v(sc), v(sc + 1)))
    e('v_and_b32 %s, %s, %s' % (v(sc + 1), sHi, v(sc + 1)))
    e('v_lshlrev_b32 %s, 16, %s' % (v(sc + 2), v(sc + 3)))
    e('v_and_b32 %s, %s, %s' % (v(sc + 3), sHi, v(sc + 3)))
    e('v_max3_f32 %s, %s, %s, %s' % (v(m0), v(sc), v(sc + 1), v(sc + 2)))
    e('v_max_f32 %s, %s, %s' % (v(m1), v(m0), v(sc + 3)))
    e('v_max_f32 %s, %s, %s' % (v(m0), v(m0), v(sc + 3)))
    e('v_permlane32_swap_b32 %s, %s' % (v(m0), v(m1)))
    e('v_max_f32 %s, %s, %s' % (v(tc), v(m0), v(m1)))
    e('v_max_f32 %s, %s, %s' % (v(m1), v(m0), v(m1)))
    e('v_permlane16_swap_b32 %s, %s' % (v(tc), v(m1)))
    e('v_max_f32 %s, %s, %s' % (v(m0), v(tc), v(m1)))
    e('v_mul_f32 %s, %s, %s' % (v(m0), sCexp, v(m0)))
    for r in range(4): e('v_fma_f32 %s, %s, %s, -%s' % (v(sc + r), v(sc + r), sCexp, v(m0)))
    for r in range(4): e('v_exp_f32 %s, %s' % (v(sc + r), v(sc + r)))
    pk = vG + 8
    def pv(r):
        for hf in range(2):
            waitfor('v%d' % (2 * r + hf))
            e('v_mfma_f32_16x16x32_bf16 %s, %s, %s, %s' % (vr(vD + 4 * hf, 4), vr(vA + 4 * r, 4), vr(vVv + 8 * r + 4 * hf, 4), '0' if r == 0 else vr(vD + 4 * hf, 4)))
    for r in range(4):
        e('v_cvt_pk_bf16_f32 %s, %s, %s' % (v(pk + r), v(sc + r), v(sc + r)))
        for k in range(4): e('v_and_b32 %s, %s, %s' % (v(vA + 4 * r + k), v(pk + r), v(vM + k)))
        if 0 < r and 2 * r <= pollpos: pv(r - 1)
    done = max(0, min(3, pollpos // 2))
    ls, l2 = vG + 5, vG + 6
    e('v_add_f32 %s, %s, %s' % (v(ls), v(sc), v(sc + 1)))
    e('v_add_f32 %s, %s, %s' % (v(tc), v(sc + 2), v(sc + 3)))
    e('v_add_f32 %s, %s, %s' % (v(l2), v(ls), v(tc)))
    e('v_add_f32 %s, %s, %s' % (v(ls), v(ls), v(tc)))
    e('v_permlane32_swap_b32 %s, %s' % (v(ls), v(l2)))
    e('v_add_f32 %s, %s, %s' % (v(tc), v(ls), v(l2)))
    e('v_add_f32 %s, %s, %s' % (v(l2), v(ls), v(l2)))
    e('v_permlane16_swap_b32 %s, %s' % (v(tc), v(l2)))
    e('v_add_f32 %s, %s, %s' % (v(ls), v(tc), v(l2)))
    e('s_mov_b64 exec, 0x101')
    e('ds_write_b32 %s, %s offset:%d' % (v(l_ml), v(m0), ML))
    e('ds_write_b32 %s, %s offset:%d' % (v(l_ml), v(ls), ML + 16))
    e('s_mov_b64 exec, -1')
    stamp('smax')
    if wopos == 'smax': woissue()
    for r in range(done, 4): pv(r)
    stamp('Varr')
    if wopos == 'Varr': woissue()
    e('ds_write_b128 %s, %s offset:%d' % (v(l_ow), vr(vD, 4), OL))
    e('ds_write_b128 %s, %s offset:%d' % (v(l_ow + 1), vr(vD + 4, 4), OL))
    e('s_waitcnt lgkmcnt(0)')
    e('s_barrier')
    mm, ll, oo = vA, vA + 4, vA + 8
    e('ds_read_b128 %s, %s offset:%d' % (vr(mm, 4), v(l_mr), ML))
    e('ds_read_b128 %s, %s offset:%d' % (vr(ll, 4), v(l_mr), ML + 16))
    for k in range(4): e('ds_read_b64 %s, %s offset:%d' % (vr(oo + 2 * k, 2), v(l_or), OL + 2048 * k))
    pb = vG; mx = vG + 4; lt = vG + 5; rr = vG + 6
    e('v_mov_b32 %s, %s' % (v(pb + 3), sT))
    e('s_cmp_eq_u32 %s, 0' % sNU)
    e('s_waitcnt lgkmcnt(5)')
    e('v_max3_f32 %s, %s, %s, %s' % (v(mx), v(mm), v(mm + 1), v(mm + 2)))
    e('v_max_f32 %s, %s, %s' % (v(mx), v(mx), v(mm + 3)))
    for k in range(4): e('v_sub_f32 %s, %s, %s' % (v(mm + k), v(mm + k), v(mx)))
    for k in range(4): e('v_exp_f32 %s, %s' % (v(mm + k), v(mm + k)))
    e('s_waitcnt lgkmcnt(4)')
    e('v_mul_f32 %s, %s, %s' % (v(lt), v(mm), v(ll)))
    for k in range(1, 4): e('v_fmac_f32 %s, %s, %s' % (v(lt), v(mm + k), v(ll + k)))
    e('v_rcp_f32 %s, %s' % (v(rr), v(lt)))
    e('v_log_f32 %s, %s' % (v(lt), v(lt)))
    e('s_waitcnt lgkmcnt(0)')
    e('v_pk_mul_f32 %s, %s, %s op_sel_hi:[1,0]' % (vr(pb, 2), vr(oo, 2), vr(mm, 2)))
    e('v_pk_fma_f32 %s, %s, %s, %s op_sel:[0,1,0] op_sel_hi:[1,1,1]' % (vr(pb, 2), vr(oo + 2, 2), vr(mm, 2), vr(pb, 2)))
    e('v_pk_fma_f32 %s, %s, %s, %s op_sel_hi:[1,0,1]' % (vr(pb, 2), vr(oo + 4, 2), vr(mm + 2, 2), vr(pb, 2)))
    e('v_pk_fma_f32 %s, %s, %s, %s op_sel:[0,1,0] op_sel_hi:[1,1,1]' % (vr(pb, 2), vr(oo + 6, 2), vr(mm + 2, 2), vr(pb, 2)))
    e('v_add_f32 %s, %s, %s' % (v(pb + 2), v(mx), v(lt)))
    e('v_pk_mul_f32 %s, %s, %s op_sel_hi:[1,0]' % (vr(pb, 2), vr(pb, 2), vr(rr, 2)))
    e('s_cbranch_scc0 L_oslow')
    e('global_store_dwordx4 %s, %s, %s' % (v(aO), vr(pb, 4), sWs))
    lab('L_opub')
    seq.append('opub')
    stamp('opub')
    if wopos == 'opub': woissue()
    e('global_load_dwordx4 %s, %s, %s sc1' % (vr(vG + 12, 4), v(aG), sWs)); seq.append('g')
    vHv = vG + 8; h2 = vG + 9; h3 = vG + 10; hv = vHv
    e('v_mov_b32 %s, 0' % v(hv))
    e('s_cmp_lg_u32 %s, 0' % sMF)
    e('s_cbranch_scc0 L_hdone')
    e('s_mov_b32 %s, %d' % (sCnt, spin_cap))
    waitfor('h')
    lab('L_hchk')
    e('v_xor_b32 %s, %s, %s' % (v(hv), v(vTh), v(vHp)))
    e('v_and_b32 %s, %s, %s' % (v(h2), v(vFF), v(hv)))
    e('v_cmp_ne_u32 vcc, 0, %s' % v(h2))
    e('s_cbranch_vccnz L_hretry')
    lab('L_hok')
    for m in DP: e('v_add_f32_dpp %s, %s, %s %s %s' % (v(hv), v(hv), v(hv), m, FULL))
    e('v_lshlrev_b32 %s, 16, %s' % (v(vB1), v(vB1)))
    e('v_cvt_pk_bf16_f32 %s, %s, %s' % (v(hv), v(hv), v(hv)))
    e('v_and_b32 %s, %s, %s' % (v(hv), sHi, v(hv)))
    e('v_add_f32 %s, %s, %s' % (v(hv), v(hv), v(vB1)))
    e('v_cvt_pk_bf16_f32 %s, %s, %s' % (v(hv), v(hv), v(hv)))
    e('v_and_b32 %s, %s, %s' % (v(hv), sHi, v(hv)))
    k1 = -2.0 * math.log2(math.e) * math.sqrt(2.0 / math.pi)
    e('v_mul_f32 %s, %s, %s' % (v(h2), v(hv), v(hv)))
    e('v_mov_b32 %s, %s' % (v(h3), hx(f2u(k1))))
    e('v_fmac_f32 %s, %s, %s' % (v(h3), hx(f2u(k1 * 0.044715)), v(h2)))
    e('v_mul_f32 %s, %s, %s' % (v(h3), v(h3), v(hv)))
    e('v_exp_f32 %s, %s' % (v(h3), v(h3)))
    e('v_add_f32 %s, 1.0, %s' % (v(h3), v(h3)))
    e('v_rcp_f32 %s, %s' % (v(h3), v(h3)))
    e('v_mul_f32 %s, %s, %s' % (v(hv), v(hv), v(h3)))
    e('v_cvt_pk_bf16_f32 %s, %s, %s' % (v(hv), v(hv), v(hv)))
    lab('L_hdone')
    for k in range(4): e('v_and_b32 %s, %s, %s' % (v(vA + k), v(vHv), v(vM + k)))
    for k in range(4): e('v_and_b32_dpp %s, %s, %s row_ror:8 %s' % (v(vA + 4 + k), v(vHv), v(vM + k), FULL))
    e('s_mov_b32 %s, %d' % (sCnt, spin_cap))
    e('s_waitcnt vmcnt(0)')
    e('v_mfma_f32_16x16x32_bf16 %s, %s, %s, 0' % (vr(vAcc, 4), vr(vA, 4), vr(vW2, 4)))
    e('v_mfma_f32_16x16x32_bf16 %s, %s, %s, %s' % (vr(vAcc, 4), vr(vA + 4, 4), vr(vW2 + 4, 4), vr(vAcc, 4)))
    stamp('wo')
    lab('L_ochk')
    e('v_cmp_ne_u32 vcc, %s, %s' % (sT, v(vG + 15)))
    e('s_cbranch_vccz L_ook')
    e('global_load_dwordx4 %s, %s, %s sc1' % (vr(vG + 12, 4), v(aG), sWs))
    e('s_sub_u32 %s, %s, 1' % (sCnt, sCnt))
    e('s_waitcnt vmcnt(0)')
    e('s_cbranch_scc0 L_ochk')
    lab('L_ook')
    e('ds_write_b128 %s, %s offset:%d' % (v(l_gw), vr(vG + 12, 4), G2))
    e('s_waitcnt lgkmcnt(0)')
    e('s_barrier')
    stamp('ogath')
    gg = vQB
    for i in range(4): e('ds_read_b128 %s, %s offset:%d' % (vr(gg + 4 * i, 4), v(l_gr), G2 + 1152 * i))
    mx = vG; s0 = vG + 1; n0 = vG + 2; n1 = vG + 3
    e('s_cmp_eq_u32 %s, 3' % sW)
    e('s_cselect_b32 %s, 0x00ff00ff, -1' % sA)
    e('s_waitcnt lgkmcnt(0)')
    e('v_max3_f32 %s, %s, %s, %s' % (v(mx), v(gg + 2), v(gg + 6), v(gg + 10)))
    e('v_max_f32 %s, %s, %s' % (v(mx), v(mx), v(gg + 14)))
    for m in DP: e('v_max_f32_dpp %s, %s, %s %s %s' % (v(mx), v(mx), v(mx), m, FULL))
    for i in range(4): e('v_sub_f32 %s, %s, %s' % (v(gg + 4 * i + 2), v(gg + 4 * i + 2), v(mx)))
    for i in range(4): e('v_exp_f32 %s, %s' % (v(gg + 4 * i + 2), v(gg + 4 * i + 2)))
    e('v_add_f32 %s, %s, %s' % (v(s0), v(gg + 2), v(gg + 6)))
    e('v_pk_mul_f32 %s, %s, %s op_sel_hi:[1,0]' % (vr(n0, 2), vr(gg, 2), vr(gg + 2, 2)))
    e('v_add_f32 %s, %s, %s' % (v(s0), v(s0), v(gg + 10)))
    e('v_pk_fma_f32 %s, %s, %s, %s op_sel_hi:[1,0,1]' % (vr(n0, 2), vr(gg + 4, 2), vr(gg + 6, 2), vr(n0, 2)))
    e('v_add_f32 %s, %s, %s' % (v(s0), v(s0), v(gg + 14)))
    e('v_pk_fma_f32 %s, %s, %s, %s op_sel_hi:[1,0,1]' % (vr(n0, 2), vr(gg + 8, 2), vr(gg + 10, 2), vr(n0, 2)))
    e('v_pk_fma_f32 %s, %s, %s, %s op_sel_hi:[1,0,1]' % (vr(n0, 2), vr(gg + 12, 2), vr(gg + 14, 2), vr(n0, 2)))
    for m in DP:
        for r in (s0, n0, n1): e('v_add_f32_dpp %s, %s, %s %s %s' % (v(r), v(r), v(r), m, FULL))
    e('v_rcp_f32 %s, %s' % (v(s0), v(s0)))
    e('v_mul_f32 %s, %s, %s' % (v(n0), v(n0), v(s0)))
    e('v_mul_f32 %s, %s, %s' % (v(n1), v(n1), v(s0)))
    e('v_cvt_pk_bf16_f32 %s, %s, %s' % (v(n0), v(n0), v(n0)))
    e('v_cvt_pk_bf16_f32 %s, %s, %s' % (v(n1), v(n1), v(n1)))
    for t in range(4):
        src = n0 if (t & 1) == 0 else n1
        for k in range(4):
            if t < 2: e('v_and_b32 %s, %s, %s' % (v(vA + 4 * t + k), v(src), v(vM + k)))
            else: e('v_and_b32_dpp %s, %s, %s row_ror:8 %s' % (v(vA + 4 * t + k), v(src), v(vM + k), FULL))
        if t > 0: e('v_mfma_f32_16x16x32_bf16 %s, %s, %s, %s' % (vr(vAcc, 4), vr(vA + 4 * (t - 1), 4), vr(vWo + 4 * (t - 1), 4), vr(vAcc, 4)))
    e('v_mfma_f32_16x16x32_bf16 %s, %s, %s, %s' % (vr(vAcc, 4), vr(vA + 12, 4), vr(vWo + 12, 4), vr(vAcc, 4)))
    e('s_mov_b32 exec_lo, %s' % sA); e('s_mov_b32 exec_hi, 0')
    for k in range(4): e('v_bfi_b32 %s, %s, %s, %s' % (v(vAcc + k), v(vFF), sTb[k], v(vAcc + k)))
    e('global_store_dwordx4 %s, %s, %s sc1' % (v(aR), vr(vAcc, 4), sWs))
    e('s_mov_b64 exec, -1')
    stamp('rpub')
    e('s_cmp_lg_u32 %s, 0' % sMF)
    e('s_cbranch_scc1 L_fin')
    sRho = sKV
    e('s_sub_u32 %s, s2, 224' % sRho)
    e('s_and_b32 %s, %s, 26' % (sA, sRho))
    e('s_cmp_eq_u32 %s, 26' % sA)
    e('s_cbranch_scc1 L_fin')
    aF = aK; aC = aV; l_fw = l_qw; l_fr = l_ml
    e('s_lshl_b32 %s, %s, 14' % (sA, sRho)); e('s_add_u32 %s, %s, %d' % (sA, sA, WS_R + 4096))
    e('v_lshl_add_u32 %s, v0, 4, %s' % (v(aF), sA))
    e('v_add_u32 %s, 0x2000, %s' % (v(aF + 1), v(aF)))
    RS = [vKk + 16 * d for d in range(4)]
    def rsweep(d):
        for i in range(4): e('global_load_dwordx4 %s, %s, %s offset:%d sc1' % (vr(RS[d] + 4 * i, 4), v(aF + (i >> 1)), sWs, -4096 + 4096 * (i & 1)))
    e('s_lshr_b32 %s, %s, 3' % (sA, sRho)); e('s_lshl_b32 %s, %s, 8' % (sA, sA))
    e('s_and_b32 %s, %s, 3' % (sB, sRho)); e('s_lshl_b32 %s, %s, 6' % (sB, sB)); e('s_add_u32 %s, %s, %s' % (sA, sA, sB))
    e('s_and_b32 %s, %s, 4' % (sB, sRho)); e('s_lshl1_add_u32 %s, %s, %s' % (sA, sB, sA))
    e('v_and_b32 %s, 3, v0' % v(l_fr))
    e('v_lshlrev_b32 %s, 4, %s' % (v(l_fr), v(l_fr)))
    e('v_add_u32 %s, %s, %s' % (v(aC), sA, v(l_fr)))
    xq, bq = vA, vA + 2
    e('global_load_dwordx2 %s, %s, %s' % (vr(xq, 2), v(aC), sX))
    e('global_load_dwordx2 %s, %s, %s' % (vr(bq, 2), v(aC), sB2))
    for d in range(rdepth - 1): rsweep(d)
    e('s_lshl_b32 %s, %s, 6' % (sA, sW))
    e('v_lshrrev_b32 %s, 2, %s' % (v(l_fw), v(t_s)))
    e('v_add3_u32 %s, %s, %s, %s' % (v(l_fw), v(l_fw), v(l_fr), sA))
    e('s_mov_b32 %s, %d' % (sCnt, spin_cap))
    lab('L_rchk')
    for d in range(rdepth):
        rsweep((d + rdepth - 1) % rdepth)
        e('s_waitcnt vmcnt(%d)' % (4 * (rdepth - 1)))
        for k in range(16): e('v_xor_b32 %s, %s, %s' % (v(vG + k), sTb[k & 3], v(RS[d] + k)))
        e('v_or3_b32 %s, %s, %s, %s' % (v(tc), v(vG), v(vG + 1), v(vG + 2)))
        e('v_or3_b32 %s, %s, %s, %s' % (v(td), v(vG + 3), v(vG + 4), v(vG + 5)))
        for k in range(6, 14, 4):
            e('v_or3_b32 %s, %s, %s, %s' % (v(tc), v(tc), v(vG + k), v(vG + k + 1)))
            e('v_or3_b32 %s, %s, %s, %s' % (v(td), v(td), v(vG + k + 2), v(vG + k + 3)))
        e('v_or3_b32 %s, %s, %s, %s' % (v(tc), v(tc), v(vG + 14), v(vG + 15)))
        e('v_bitop3_b32 %s, %s, %s, %s bitop3:0xa8' % (v(tc), v(tc), v(td), v(vFF)))
        e('v_cmp_ne_u32 vcc, 0, %s' % v(tc))
        e('s_cbranch_vccz L_rok')
    e('s_sub_u32 %s, %s, 1' % (sCnt, sCnt))
    e('s_cbranch_scc0 L_rchk')
    lab('L_rok')
    stamp('rgath')
    e('v_pk_add_f32 %s, %s, %s' % (vr(vG, 2), vr(vG, 2), vr(vG + 4, 2)))
    e('v_pk_add_f32 %s, %s, %s' % (vr(vG + 2, 2), vr(vG + 2, 2), vr(vG + 6, 2)))
    e('v_pk_add_f32 %s, %s, %s' % (vr(vG + 8, 2), vr(vG + 8, 2), vr(vG + 12, 2)))
    e('v_pk_add_f32 %s, %s, %s' % (vr(vG + 10, 2), vr(vG + 10, 2), vr(vG + 14, 2)))
    e('v_pk_add_f32 %s, %s, %s' % (vr(vG, 2), vr(vG, 2), vr(vG + 8, 2)))
    e('v_pk_add_f32 %s, %s, %s' % (vr(vG + 2, 2), vr(vG + 2, 2), vr(vG + 10, 2)))
    e('v_permlane32_swap_b32 %s, %s' % (v(vG), v(vG + 2)))
    e('v_permlane32_swap_b32 %s, %s' % (v(vG + 1), v(vG + 3)))
    e('v_pk_add_f32 %s, %s, %s' % (vr(vG, 2), vr(vG, 2), vr(vG + 2, 2)))
    e('v_permlane16_swap_b32 %s, %s' % (v(vG), v(vG + 1)))
    e('v_add_f32 %s, %s, %s' % (v(vG), v(vG), v(vG + 1)))
    e('v_add_f32_dpp %s, %s, %s row_ror:4 %s' % (v(vG), v(vG), v(vG), FULL))
    e('v_add_f32_dpp %s, %s, %s row_ror:8 %s' % (v(vG), v(vG), v(vG), FULL))
    e('s_mov_b32 exec_lo, 0x000f000f'); e('s_mov_b32 exec_hi, 0x000f000f')
    e('ds_write_b32 %s, %s offset:%d' % (v(l_fw), v(vG), F3))
    e('s_mov_b64 exec, -1')
    xf = vA + 4
    for d in range(2):
        e('v_lshlrev_b32 %s, 16, %s' % (v(xf + 2 * d), v(xq + d)))
        e('v_and_b32 %s, %s, %s' % (v(xf + 2 * d + 1), sHi, v(xq + d)))
        e('v_lshlrev_b32 %s, 16, %s' % (v(xf + 4 + 2 * d), v(bq + d)))
        e('v_and_b32 %s, %s, %s' % (v(xf + 4 + 2 * d + 1), sHi, v(bq + d)))
    e('s_cmp_eq_u32 %s, 0' % sW)
    e('s_waitcnt lgkmcnt(0)')
    e('s_barrier')
    e('s_cbranch_scc0 L_fin')
    for k in range(4): e('ds_read_b128 %s, %s offset:%d' % (vr(vG + 4 * k, 4), v(l_fr), F3 + 64 * k))
    e('v_pk_add_f32 %s, %s, %s' % (vr(xf, 2), vr(xf, 2), vr(xf + 4, 2)))
    e('v_pk_add_f32 %s, %s, %s' % (vr(xf + 2, 2), vr(xf + 2, 2), vr(xf + 6, 2)))
    e('s_mov_b64 exec, 15')
    for k in range(4):
        e('s_waitcnt lgkmcnt(%d)' % (3 - k))
        e('v_pk_add_f32 %s, %s, %s' % (vr(xf, 2), vr(xf, 2), vr(vG + 4 * k, 2)))
        e('v_pk_add_f32 %s, %s, %s' % (vr(xf + 2, 2), vr(xf + 2, 2), vr(vG + 4 * k + 2, 2)))
    e('v_cvt_pk_bf16_f32 %s, %s, %s' % (v(xf), v(xf), v(xf + 1)))
    e('v_cvt_pk_bf16_f32 %s, %s, %s' % (v(xf + 1), v(xf + 2), v(xf + 3)))
    e('global_store_dwordx2 %s, %s, %s %s' % (v(aC), vr(xf, 2), sOut, outflag))
    e('s_cmp_eq_u32 %s, 0' % sRho)
    e('s_cbranch_scc0 L_fin')
    e('s_mov_b64 exec, 1')
    e('v_mov_b32 %s, %d' % (v(tc), WS_E))
    e('v_mov_b32 %s, %s' % (v(td), sT))
    e('global_store_dword %s, %s, %s %s' % (v(tc), v(td), sWs, outflag))
    lab('L_fin')
    if stamps:
        e('s_mov_b64 exec, -1')
        e('s_waitcnt vmcnt(0)')
        stamp('end')
        e('s_waitcnt lgkmcnt(0)')
        e('s_mov_b64 exec, 1')
        e('s_mul_i32 %s, s2, 5' % sA); e('s_add_u32 %s, %s, %s' % (sA, sA, sW)); e('s_lshl_b32 %s, %s, 6' % (sA, sA))
        e('s_add_u32 %s, %s, %d' % (sA, sA, WS_T))
        e('v_mov_b32 v6, %s' % sA)
        for k in range(len(names)): e('v_mov_b32 v%d, s%d' % (8 + k, ST0 + 2 * k))
        e('s_getreg_b32 %s, hwreg(HW_REG_XCC_ID)' % sA)
        e('v_mov_b32 v22, %s' % sA); e('v_mov_b32 v23, %s' % sW); e('v_mov_b32 v21, 0')
        for k in range(4): e('global_store_dwordx4 v6, v[%d:%d], %s offset:%d' % (8 + 4 * k, 11 + 4 * k, sWs, 16 * k))
    lab('L_end')
    e('s_endpgm')
    lab('L_qslow')
    e('v_and_b32 %s, 0xf0, %s' % (v(vZ), v(td)))
    e('v_or3_b32 %s, %s, %s, %s' % (v(vZ), v(tc), v(vG + 7), v(vZ)))
    e('v_and_b32 %s, %s, %s' % (v(vZ), v(vFF), v(vZ)))
    e('v_cmp_ne_u32 vcc, 0, %s' % v(vZ))
    e('s_cbranch_vccnz L_qretry')
    e('v_mov_b32 %s, 0x%x' % (v(vFl), OS_SLOW))
    e('v_and_b32 %s, -16, %s' % (v(vG), v(vG)))
    e('v_and_b32 %s, -16, %s' % (v(vG + 4), v(vG + 4)))
    e('s_branch L_qok')
    lab('L_qretry')
    e('s_sub_u32 %s, %s, 1' % (sCnt, sCnt))
    e('s_cbranch_scc1 L_qok')
    qpoll()
    e('s_waitcnt vmcnt(0)')
    e('s_branch L_qchk')
    lab('L_hretry')
    e('s_sub_u32 %s, %s, 1' % (sCnt, sCnt))
    e('s_cbranch_scc1 L_hok')
    e('global_load_dword %s, %s, %s sc1' % (v(vHp), v(aH), sWs))
    e('s_waitcnt vmcnt(0)')
    e('s_branch L_hchk')
    lab('L_oslow')
    e('global_store_dwordx4 %s, %s, %s sc1' % (v(aO), vr(pb, 4), sWs))
    lab('L_last')
    e('s_branch L_opub')
    body = fix_hazards(L)
    hdr = open('cdna_kernels/%s.s.ref' % NAME).read().split('\n')
    hdr = [x for x in hdr if x.startswith(';') and '@launch' not in x]
    if stamps: hdr = ['; stampnames: ' + ' '.join(names)] + hdr
    out = hdr + ['; @launch grid=(256,1,1) block=(320,1,1) lds=%d' % LDS,
        '.amdgcn_target "amdgcn-amd-amdhsa--gfx950"', '.text', '.globl %s_kernel' % NAME, '.p2align 8',
        '.type %s_kernel,@function' % NAME, '%s_kernel:' % NAME] + body + [
        '.section .rodata,"a"', '.p2align 6', '.amdhsa_kernel %s_kernel' % NAME,
        '  .amdhsa_next_free_vgpr %d' % NV, '  .amdhsa_next_free_sgpr 96', '  .amdhsa_accum_offset %d' % NV,
        '  .amdhsa_group_segment_fixed_size 0', '  .amdhsa_kernarg_size 104', '  .amdhsa_user_sgpr_count 2',
        '  .amdhsa_user_sgpr_kernarg_segment_ptr 1', '  .amdhsa_system_sgpr_workgroup_id_x 1',
        '  .amdhsa_float_denorm_mode_32 3', '.end_amdhsa_kernel', '']
    return '\n'.join(out)

if __name__ == '__main__':
    kw = {}
    for a in sys.argv[2:]:
        k, x = a.split('=')
        try: x = eval(x)
        except Exception: pass
        kw[k] = x
    open(sys.argv[1], 'w').write(gen(**kw))
```

```python
import sys, math, struct
sys.path.insert(0, 'work')
from asmlib import fix_hazards

NAME = 'parallel_sum__sliding_block_cached__dense_activation_gelu__decode'
def f2u(x): return struct.unpack('<I', struct.pack('<f', x))[0]
def hx(x): return '0x%08x' % (x & 0xffffffff)
def v(i): return 'v%d' % i
def vr(i, n): return 'v[%d:%d]' % (i, i + n - 1)
FULL = 'row_mask:0xf bank_mask:0xf'

def gen(stamps=False, spin_cap=200000, pollpos=8, pollgate='k7', wopos='v5', force_slow=False, prewrite=False, preo='nt',
        pretouch=False, outflag='', rdepth=1, codepf=True, gprio=3, bar0='x', kfirst=8, ackst=False, gap=0, small='', cpf='', pst='sc1', pld='sc1', diag=None):
    pst = pst.replace('_', ' '); pld = pld.replace('_', ' ')
    L = []
    def e(s): L.append('    ' + s)
    def lab(s): L.append(s + ':')
    NT = ' nt'
    WS_E = 0
    WS_Q = 0x1000
    WS_H = 0x11000
    WS_R = 0x20000
    WS_O = 0x100000
    OS_SLOW = 0x200000
    WS_T = 0x200000
    XN = 0; HV = 1024; QB = 2048; FL = 3072; ML = 3136; F3 = 3328; OL = 4096; G2 = 12288
    LDS = G2 + 4608
    sX, sK, sV, sWq, sWo, sW1, sB1 = 's[4:5]', 's[6:7]', 's[8:9]', 's[10:11]', 's[12:13]', 's[16:17]', 's[18:19]'
    sW2, sB2, sOut, sWs = 's[20:21]', 's[22:23]', 's[24:25]', 's[28:29]'
    sH, sC, sKV, sT, sW, sA, sB, sCnt, sHi, sCexp, sMF, sFb, sTq = 's30', 's31', 's32', 's33', 's34', 's35', 's36', 's37', 's38', 's39', 's40', 's41', 's46'
    sTb = ['s42', 's43', 's44', 's45']
    sNU = 's47'
    sP = ['s[48:49]', 's[50:51]', 's[52:53]']; sPn = [48, 50, 52]
    sEx = 's[54:55]'
    sPC = 's[56:57]'
    ST0 = 64
    names = ['start', 'karg', 'Kiss', 'Viss', 'qarr', 'smax', 'Varr', 'opub', 'ogath', 'wo', 'rpub', 'rgath', 'end']
    gnames = {'x': 'Kiss', 'wq': 'Viss', 'qpub': 'qarr', 'hpub': 'smax', 'ack': 'Varr'}
    def stamp(n):
        if stamps:
            k = names.index(gnames.get(n, n)); e('s_memrealtime s[%d:%d]' % (ST0 + 2 * k, ST0 + 2 * k + 1))
    def tagcalc():
        e('s_add_u32 %s, %s, 0x5b3d27c5' % (sT, sT))
        e('s_cmp_eq_u32 %s, 0' % sT)
        e('s_cselect_b32 %s, 0x5b3d27c5, %s' % (sT, sT))
        for k in range(4): e('s_bfe_u32 %s, %s, 0x%x' % (sTb[k], sT, 0x80000 | (8 * k)))
        e('s_getreg_b32 %s, hwreg(HW_REG_XCC_ID, 0, 4)' % sA)
        if force_slow: e('s_and_b32 %s, s2, 8' % sA)
        e('s_and_b32 %s, %s, 0xf0' % (sTq, sT))
        e('s_or_b32 %s, %s, %s' % (sTq, sTq, sA))
    def masks(vM, t0, t1):
        e('v_and_b32 %s, 1, v0' % v(t0))
        e('v_lshlrev_b32 %s, 4, %s' % (v(t0), v(t0)))
        e('v_mov_b32 %s, 0xffff' % v(t1))
        e('v_lshlrev_b32 %s, %s, %s' % (v(t1), v(t0), v(t1)))
        e('v_bfe_u32 %s, v0, 1, 2' % v(t0))
        for r in range(4):
            e('v_cmp_eq_u32 vcc, %d, %s' % (r, v(t0)))
            e('v_cndmask_b32 %s, 0, %s, vcc' % (v(vM + r), v(t1)))

    vPF = 1
    e('s_load_dwordx16 s[4:19], s[0:1], 0')
    e('s_load_dwordx8 s[20:27], s[0:1], 64')
    e('s_load_dwordx2 s[28:29], s[0:1], 96')
    if stamps:
        for k in range(1, len(names)): e('s_mov_b32 s%d, 0' % (ST0 + 2 * k))
    stamp('start')
    e('s_cmpk_ge_u32 s2, 0x100')
    e('s_cbranch_scc1 L_end')
    if codepf:
        e('s_getpc_b64 %s' % sPC)
        lab('L_pc')
        e('v_lshlrev_b32 v1, 7, v0')
        e('v_min_u32 v1, L_last-L_pc, v1')
        e('global_load_dword v1, v1, %s %s' % (sPC, cpf))
    e('s_and_b32 %s, s2, 7' % sH)
    e('s_lshr_b32 %s, s2, 3' % sC)
    if True:
        e('v_subrev_u32 v0, 64, v0'); e('v_min_u32 v2, 0x13f, v0'); e('v_bfi_b32 v0, 63, v0, v2')
    e('v_readfirstlane_b32 %s, v0' % sW)
    e('v_bfe_u32 v2, v0, 3, 3')
    e('v_and_b32 v3, 7, v0')
    e('s_lshr_b32 %s, %s, 6' % (sW, sW))
    e('s_cmp_eq_u32 %s, 4' % sW)
    e('s_cbranch_scc0 L_A')
    gXs = 4
    gWq = 8
    gW1 = 64
    gA = 92
    gSel = 116
    gM = 124
    gP = 128
    gXh = 136
    gD = 144
    gt = list(range(152, 168))
    a_wq, a_xs, a_w1, a_b1, l_ = gt[0], gt[1], gt[2], gt[3], gt[4]
    if gprio: e('s_setprio %d' % gprio)
    e('s_lshr_b32 %s, %s, 3' % (sA, sC))
    e('s_mul_i32 %s, %s, 112' % (sFb, sA))
    e('v_mad_u32_u24 %s, v2, 14, %s' % (v(gt[5]), sFb))
    e('s_and_b32 %s, %s, 7' % (sA, sC))
    e('s_lshl3_add_u32 %s, %s, %s' % (sA, sH, sA))
    e('s_lshl_b32 %s, %s, 7' % (sA, sA))
    e('v_lshl_add_u32 %s, v3, 4, %s' % (v(a_wq), sA))
    e('v_lshl_add_u32 %s, %s, 13, %s' % (v(a_wq), v(gt[5]), v(a_wq)))
    e('v_and_b32 %s, 63, v0' % v(l_))
    e('v_min_u32 %s, 55, %s' % (v(a_xs), v(l_)))
    e('v_lshlrev_b32 %s, 4, %s' % (v(a_xs), v(a_xs)))
    masks(gM, gt[6], gt[7])
    e('s_mov_b32 %s, 0xffff0000' % sHi)
    e('v_mov_b32 %s, 0x0c0c0c0c' % v(gt[6]))
    e('s_mov_b32 %s, 0x01000100' % sA); e('s_mov_b32 %s, 0x03020302' % sB)
    for r in range(4):
        e('v_bfi_b32 %s, %s, %s, %s' % (v(gSel + r), v(gM + r), sA, v(gt[6])))
        e('v_bfi_b32 %s, %s, %s, %s' % (v(gSel + 4 + r), v(gM + r), sB, v(gt[6])))
    e('v_cmp_gt_u32 %s, 56, %s' % (sEx, v(l_)))
    e('s_waitcnt lgkmcnt(0)')
    stamp('karg')
    e('global_load_dwordx4 %s, %s, %s %s' % (vr(gXs, 4), v(a_xs), sX, small))
    for t in range(14):
        e('global_load_dwordx4 %s, %s, %s%s' % (vr(gWq + 4 * t, 4), v(a_wq), sWq, NT))
        if t < 13: e('v_add_u32 %s, 0x2000, %s' % (v(a_wq), v(a_wq)))
        if t == 0: e('s_load_dword %s, %s, %d' % (sT, sWs, WS_E))
        if t == 1:
            e('s_mul_i32 %s, s2, 2341' % sB); e('s_lshr_b32 %s, %s, 16' % (sB, sB)); e('s_mul_i32 %s, %s, 28' % (sA, sB))
        if t == 2:
            e('s_sub_u32 %s, s2, %s' % (sA, sA)); e('s_lshl3_add_u32 %s, %s, %s' % (sKV, sA, sB)); e('s_mul_i32 %s, %s, 56' % (sB, sB))
        if t == 3:
            e('v_mad_u32_u24 %s, v2, 7, %s' % (v(a_b1), sB)); e('s_lshl_b32 %s, %s, 7' % (sA, sA))
        if t == 4:
            e('v_lshl_add_u32 %s, v3, 4, %s' % (v(a_w1), sA)); e('s_movk_i32 %s, 3584' % sA)
        if t == 5:
            e('v_mad_u32_u24 %s, %s, %s, %s' % (v(a_w1), v(a_b1), sA, v(a_w1)))
    e('s_cmp_lt_u32 %s, 28' % sC)
    e('s_cbranch_scc0 L_Gnow1')
    for t in range(7):
        e('global_load_dwordx4 %s, %s, %s offset:%d%s' % (vr(gW1 + 4 * t, 4), v(a_w1), sW1, 3584 * (t & 1), NT))
        if t & 1: e('v_add_u32 %s, %d, %s' % (v(a_w1), 2 * 3584, v(a_w1)))
    e('s_branch L_Gj')
    lab('L_Gnow1')
    e('s_sub_u32 %s, s2, 224' % sA); e('s_lshl_b32 %s, %s, 14' % (sA, sA)); e('s_add_u32 %s, %s, %d' % (sA, sA, WS_R))
    e('v_lshl_add_u32 %s, %s, 7, %s' % (v(a_w1), v(l_), sA))
    e('v_add_u32 %s, 0x2000, %s' % (v(a_b1), v(a_w1)))
    if pretouch:
        e('global_load_dword %s, %s, %s %s' % (v(gW1), v(a_w1), sWs, pretouch.replace('_', ' ')))
        e('global_load_dword %s, %s, %s %s' % (v(gW1 + 1), v(a_b1), sWs, pretouch.replace('_', ' ')))
    else:
        e('global_load_dword %s, %s, %s' % (v(gW1), v(a_xs), sX)); e('global_load_dword %s, %s, %s' % (v(gW1 + 1), v(a_xs), sX))
    e('global_load_dword %s, %s, %s %s' % (v(gW1 + 2), v(a_xs), sB2, small))
    e('global_load_dword %s, %s, %s %s' % (v(gW1 + 3), v(a_xs), sOut, small))
    for t in range(3): e('global_load_dword %s, %s, %s' % (v(gW1 + 4 + t), v(a_xs), sX))
    e('v_mov_b32 %s, 0' % v(a_b1))
    lab('L_Gj')
    if bar0 == 'iss': e('s_barrier')
    e('s_waitcnt vmcnt(21)')
    if bar0 == 'x': e('s_barrier')
    stamp('x')
    xs = gA
    for i in range(4):
        e('v_lshlrev_b32 %s, 16, %s' % (v(xs + 2 * i), v(gXs + i)))
        e('v_and_b32 %s, %s, %s' % (v(xs + 2 * i + 1), sHi, v(gXs + i)))
    ts, tm, tv = gt[6], gt[8], gt[10]
    xd = gA + 8
    def wave_sum(r, dst):
        for m in ['row_shr:1', 'row_shr:2', 'row_shr:4', 'row_shr:8']:
            e('v_add_f32_dpp %s, %s, %s %s %s bound_ctrl:0' % (v(r), v(r), v(r), m, FULL))
        e('v_add_f32_dpp %s, %s, %s row_bcast:15 row_mask:0xa bank_mask:0xf' % (v(r), v(r), v(r)))
        e('v_add_f32_dpp %s, %s, %s row_bcast:31 row_mask:0xc bank_mask:0xf' % (v(r), v(r), v(r)))
        e('v_readlane_b32 %s, %s, 63' % (dst, v(r)))
    e('v_pk_add_f32 %s, %s, %s' % (vr(xd, 2), vr(xs, 2), vr(xs + 2, 2)))
    e('v_pk_add_f32 %s, %s, %s' % (vr(xd + 2, 2), vr(xs + 4, 2), vr(xs + 6, 2)))
    e('v_pk_add_f32 %s, %s, %s' % (vr(xd, 2), vr(xd, 2), vr(xd + 2, 2)))
    e('v_add_f32 %s, %s, %s' % (v(ts), v(xd), v(xd + 1)))
    e('v_cndmask_b32 %s, 0, %s, %s' % (v(ts), v(ts), sEx))
    e('v_mov_b32 %s, %s' % (v(tv), hx(f2u(1.0 / 448))))
    wave_sum(ts, sA)
    e('v_mul_f32 %s, %s, %s' % (v(tm), sA, v(tv)))
    for i in range(4): e('v_pk_add_f32 %s, %s, %s op_sel_hi:[1,0] neg_lo:[0,1] neg_hi:[0,1]' % (vr(xd + 2 * i, 2), vr(xs + 2 * i, 2), vr(tm, 2)))
    e('v_pk_mul_f32 %s, %s, %s' % (vr(ts, 2), vr(xd, 2), vr(xd, 2)))
    for i in range(1, 4): e('v_pk_fma_f32 %s, %s, %s, %s' % (vr(ts, 2), vr(xd + 2 * i, 2), vr(xd + 2 * i, 2), vr(ts, 2)))
    e('v_add_f32 %s, %s, %s' % (v(ts), v(ts), v(ts + 1)))
    e('v_cndmask_b32 %s, 0, %s, %s' % (v(ts), v(ts), sEx))
    e('v_cvt_pk_bf16_f32 %s, %s, %s' % (v(tm), v(tm), v(tm)))
    e('v_and_b32 %s, %s, %s' % (v(tm), sHi, v(tm)))
    dops = []
    for i in range(4): dops.append('v_pk_add_f32 %s, %s, %s op_sel_hi:[1,0] neg_lo:[0,1] neg_hi:[0,1]' % (vr(xd + 2 * i, 2), vr(xs + 2 * i, 2), vr(tm, 2)))
    for i in range(4): dops.append('v_cvt_pk_bf16_f32 %s, %s, %s' % (v(xs + i), v(xd + 2 * i), v(xd + 2 * i + 1)))
    for i in range(4):
        dops.append('v_lshlrev_b32 %s, 16, %s' % (v(xd + 2 * i), v(xs + i)))
        dops.append('v_and_b32 %s, %s, %s' % (v(xd + 2 * i + 1), sHi, v(xs + i)))
    red = ['v_add_f32_dpp %s, %s, %s %s %s bound_ctrl:0' % (v(ts), v(ts), v(ts), m, FULL) for m in ['row_shr:1', 'row_shr:2', 'row_shr:4', 'row_shr:8']]
    red += ['v_add_f32_dpp %s, %s, %s row_bcast:15 row_mask:0xa bank_mask:0xf' % (v(ts), v(ts), v(ts)),
            'v_add_f32_dpp %s, %s, %s row_bcast:31 row_mask:0xc bank_mask:0xf' % (v(ts), v(ts), v(ts)),
            'v_readlane_b32 %s, %s, 63' % (sA, v(ts))]
    for r_ in red:
        e(r_); e(dops.pop(0)); e(dops.pop(0))
    e('v_mul_f32 %s, %s, %s' % (v(tv), sA, v(tv)))
    e('v_cvt_pk_bf16_f32 %s, %s, %s' % (v(tv), v(tv), v(tv)))
    e('v_and_b32 %s, %s, %s' % (v(tv), sHi, v(tv)))
    e('v_add_f32 %s, %s, %s' % (v(tv), hx(f2u(1e-5)), v(tv)))
    e('v_cvt_pk_bf16_f32 %s, %s, %s' % (v(tv), v(tv), v(tv)))
    e('v_and_b32 %s, %s, %s' % (v(tv), sHi, v(tv)))
    e('v_sqrt_f32 %s, %s' % (v(tv), v(tv)))
    e(dops.pop(0))
    e('v_cvt_pk_bf16_f32 %s, %s, %s' % (v(tv), v(tv), v(tv)))
    e('v_and_b32 %s, %s, %s' % (v(tv), sHi, v(tv)))
    e('v_rcp_f32 %s, %s' % (v(tv), v(tv)))
    e(dops.pop(0))
    assert not dops
    for i in range(4): e('v_pk_mul_f32 %s, %s, %s op_sel_hi:[1,0]' % (vr(xd + 2 * i, 2), vr(xd + 2 * i, 2), vr(tv, 2)))
    for i in range(4): e('v_cvt_pk_bf16_f32 %s, %s, %s' % (v(xs + i), v(xd + 2 * i), v(xd + 2 * i + 1)))
    e('v_lshlrev_b32 %s, 4, %s' % (v(gt[6]), v(l_)))
    e('ds_write_b128 %s, %s offset:%d' % (v(gt[6]), vr(xs, 4), XN))
    e('v_lshlrev_b32 %s, 1, %s' % (v(gt[7]), v(gt[5])))
    e('v_lshlrev_b32 %s, 1, %s' % (v(gt[6]), v(a_b1)))
    for k in range(3): e('ds_read2_b32 %s, %s offset0:%d offset1:%d' % (vr(gP + 2 * k, 2), v(gt[7]), XN // 4 + 2 * k, XN // 4 + 2 * k + 1))
    e('ds_read_b32 %s, %s offset:%d' % (v(gP + 6), v(gt[7]), XN + 24))
    for t in range(7): e('ds_read_u16 %s, %s offset:%d' % (v(gXh + t), v(gt[6]), XN + 2 * t))
    e('s_waitcnt lgkmcnt(0)')
    def ga(t): return gA + 4 * (t % 6)
    for k in range(7):
        for r in range(4): e('v_perm_b32 %s, %s, %s, %s' % (v(ga(2 * k) + r), v(gP + k), v(gP + k), v(gSel + r)))
        for r in range(4): e('v_perm_b32 %s, %s, %s, %s' % (v(ga(2 * k + 1) + r), v(gP + k), v(gP + k), v(gSel + 4 + r)))
        if k >= 1:
            for t in (2 * k - 2, 2 * k - 1):
                e('s_waitcnt vmcnt(%d)' % (20 - t))
                e('v_mfma_f32_16x16x32_bf16 %s, %s, %s, %s' % (vr(gD, 4), vr(ga(t), 4), vr(gWq + 4 * t, 4), '0' if t == 0 else vr(gD, 4)))
        if k == 0: tagcalc()
    for t in (12, 13):
        e('s_waitcnt vmcnt(%d)' % (20 - t))
        e('v_mfma_f32_16x16x32_bf16 %s, %s, %s, %s' % (vr(gD, 4), vr(ga(t), 4), vr(gWq + 4 * t, 4), vr(gD, 4)))
    stamp('wq')
    e('s_lshl_b32 %s, %s, 13' % (sA, sH)); e('s_lshl_b32 %s, %s, 8' % (sB, sC)); e('s_add_u32 %s, %s, %s' % (sA, sA, sB))
    e('s_add_u32 %s, %s, %d' % (sA, sA, WS_Q))
    e('v_lshl_add_u32 %s, v3, 4, %s' % (v(gt[6]), sA))
    e('v_and_b32 %s, 16, v0' % v(gt[7]))
    e('v_lshl_add_u32 %s, %s, 3, %s' % (v(gt[6]), v(gt[7]), v(gt[6])))
    e('v_mov_b32 %s, 0xff' % v(gt[7]))
    for r in range(4): e('v_permlane32_swap_b32 %s, %s' % (v(gD + r), v(gD + 4 + r)))
    for r in range(4): e('v_add_f32_dpp %s, %s, %s row_ror:8 %s' % (v(gD + r), v(gD + 4 + r), v(gD + r), FULL))
    for r in range(4): e('v_bfi_b32 %s, %s, %s, %s' % (v(gD + r), v(gt[7]), sTq if r == 0 else sTb[r], v(gD + r)))
    e('s_mov_b64 exec, 0x00ff00ff')
    e('global_store_dwordx4 %s, %s, %s %s' % (v(gt[6]), vr(gD, 4), sWs, pst))
    e('s_mov_b64 exec, -1')
    stamp('qpub')
    e('s_cmp_lt_u32 %s, 28' % sC)
    e('s_cbranch_scc0 L_Gend')
    gE = gWq
    for t in range(7):
        for r in range(4): e('v_perm_b32 %s, %s, %s, %s' % (v(ga(t) + r), v(gXh + t), v(gXh + t), v(gSel + r)))
        if t >= 1:
            e('s_waitcnt vmcnt(%d)' % (8 - t))
            e('v_mfma_f32_16x16x32_bf16 %s, %s, %s, %s' % (vr(gE, 4), vr(ga(t - 1), 4), vr(gW1 + 4 * (t - 1), 4), '0' if t == 1 else vr(gE, 4)))
    e('s_lshl_b32 %s, %s, 8' % (sA, sKV)); e('s_add_u32 %s, %s, %d' % (sA, sA, WS_H))
    e('s_waitcnt vmcnt(1)')
    e('v_mfma_f32_16x16x32_bf16 %s, %s, %s, %s' % (vr(gE, 4), vr(ga(6), 4), vr(gW1 + 24, 4), vr(gE, 4)))
    e('v_lshl_add_u32 %s, v3, 5, %s' % (v(gt[6]), sA))
    e('v_and_b32 %s, 16, v0' % v(gt[8]))
    e('v_add_u32 %s, %s, %s' % (v(gt[6]), v(gt[8]), v(gt[6])))
    for r in range(4): e('v_permlane32_swap_b32 %s, %s' % (v(gE + r), v(gE + 4 + r)))
    for r in range(4): e('v_add_f32_dpp %s, %s, %s row_ror:8 %s' % (v(gE + r), v(gE + 4 + r), v(gE + r), FULL))
    for r in range(4): e('v_bfi_b32 %s, %s, %s, %s' % (v(gE + r), v(gt[7]), sTb[r], v(gE + r)))
    e('s_mov_b64 exec, 0x00ff00ff')
    e('global_store_dwordx4 %s, %s, %s %s' % (v(gt[6]), vr(gE, 4), sWs, pst))
    e('s_mov_b64 exec, -1')
    lab('L_Gend')
    stamp('hpub')
    e('s_barrier')
    if ackst: e('s_waitcnt vmcnt(0)'); stamp('ack')
    e('s_barrier')
    if stamps:
        e('s_barrier'); e('s_barrier'); e('s_branch L_fin')
    else: e('s_endpgm')

    vM = 4
    vFF = 8
    aK = 10
    aV = 14
    aQ, aWo, aW2, aO, aG, aR = 16, 17, 18, 19, 20, 21
    l_qw, l_ml, l_or, l_gw, l_gr, l_mr, l_hv = 22, 23, 24, 25, 26, 27, 28
    l_ow = 30
    l_qr = 32
    t_j, t_s, t_l, tc, td = 36, 37, 38, 39, 40
    aH, vTh, vHp, vB1 = 41, 42, 43, 9
    aG0 = 28
    vZ = 44
    vKk = 48
    vVv = 80
    vWo = 112
    vW2 = 128
    vG = 136
    vD = 152
    vAcc = 160
    vFl = 164
    vQB = None; vA = None
    NV = 168 + 32
    vQB = 168; vA = 184
    DP = ['quad_perm:[1,0,3,2]', 'quad_perm:[2,3,0,1]', 'row_half_mirror']
    lab('L_A')
    e('s_lshl_b32 %s, %s, 22' % (sKV, sH))
    e('s_lshl_b32 %s, %s, 15' % (sA, sC))
    e('s_add_u32 %s, %s, %s' % (sKV, sKV, sA))
    e('s_lshl_b32 %s, %s, 11' % (sA, sW))
    e('s_add_u32 %s, %s, %s' % (sKV, sKV, sA))
    e('s_add_u32 %s, %s, 0x300000' % (sKV, sKV))
    e('s_and_b32 %s, %s, 3' % (sB, sC))
    e('s_lshl_b32 %s, %s, 7' % (sB, sB))
    e('s_add_u32 %s, %s, %s' % (sA, sKV, sB))
    e('v_and_b32 %s, 48, v0' % v(t_s))
    e('v_bfe_u32 %s, v0, 2, 2' % v(tc))
    e('v_lshl_add_u32 %s, %s, 9, %s' % (v(aK), v(tc), v(t_s)))
    e('v_and_b32 %s, 2, v0' % v(tc))
    e('v_lshl_add_u32 %s, %s, 12, %s' % (v(aK), v(tc), v(aK)))
    e('v_and_b32 %s, 1, v0' % v(td))
    e('v_lshl_add_u32 %s, %s, 6, %s' % (v(aK), v(td), v(aK)))
    e('v_add_u32 %s, %s, %s' % (v(aK), sA, v(aK)))
    for t in range(1, 4): e('v_xor_b32 %s, 0x%x, %s' % (v(aK + t), t << 7, v(aK)))
    e('v_and_b32 %s, 15, v0' % v(t_j))
    e('s_and_b32 %s, %s, 1' % (sA, sC)); e('s_lshl_b32 %s, %s, 8' % (sA, sA)); e('s_add_u32 %s, %s, %s' % (sA, sA, sKV))
    e('v_lshlrev_b32 %s, 5, %s' % (v(aV), v(t_s)))
    e('v_lshl_add_u32 %s, %s, 4, %s' % (v(aV), v(t_j), v(aV)))
    e('v_add_u32 %s, %s, %s' % (v(aV), sA, v(aV)))
    e('v_xor_b32 %s, 0x100, %s' % (v(aV + 1), v(aV)))
    e('s_lshl_b32 %s, %s, 17' % (sA, sH)); e('s_lshl_b32 %s, %s, 7' % (sB, sC)); e('s_add_u32 %s, %s, %s' % (sA, sA, sB))
    e('s_add_u32 %s, %s, %d' % (sA, sA, WS_O))
    e('v_lshrrev_b32 %s, 3, v0' % v(tc))
    e('v_lshl_add_u32 %s, v3, 4, %s' % (v(aO), sA))
    e('v_lshl_add_u32 %s, %s, 12, %s' % (v(aO), v(tc), v(aO)))
    e('s_lshl_b32 %s, %s, 13' % (sA, sH)); e('s_lshl_b32 %s, %s, 9' % (sB, sW)); e('s_add_u32 %s, %s, %s' % (sA, sA, sB))
    e('s_add_u32 %s, %s, %d' % (sA, sA, WS_Q))
    e('v_and_b32 %s, 31, v0' % v(tc))
    e('v_lshl_add_u32 %s, %s, 4, %s' % (v(aQ), v(tc), sA))
    e('v_and_b32 %s, 32, v0' % v(tc))
    e('v_lshl_add_u32 %s, %s, 7, %s' % (v(aQ), v(tc), v(aQ)))
    for k in range(4): e('v_mov_b32 %s, 0' % v(vZ + k))
    e('s_waitcnt lgkmcnt(0)')
    stamp('karg')
    e('s_load_dword %s, %s, %d' % (sT, sWs, WS_E))
    sPK = 's[58:59]'
    e('s_add_u32 s58, s6, 0x4000'); e('s_addc_u32 s59, s7, 0')
    e('s_barrier')
    seq = []
    def gapf():
        for _ in range(gap): e('s_mov_b32 %s, 0' % sNU)
    def kload(i):
        o, t = i >> 2, i & 3
        e('global_load_dwordx4 %s, %s, %s%s' % (vr(vKk + 16 * o + 4 * t, 4), v(aK + t), sK if o == 0 else sPK, NT)); seq.append('k%d' % i); gapf()
    def vload(i):
        r, hf = i >> 1, i & 1
        e('global_load_dwordx4 %s, %s, %s%s' % (vr(vVv + 8 * r + 4 * hf, 4), v(aV + hf), sV if r == 0 else sP[r - 1], NT)); seq.append('v%d' % i); gapf()
    def qpoll():
        e('global_load_dwordx4 %s, %s, %s %s' % (vr(vG, 4), v(aQ), sWs, pld))
        e('global_load_dwordx4 %s, %s, %s offset:2048 %s' % (vr(vG + 4, 4), v(aQ), sWs, pld))
    def woissue():
        e('global_load_dword %s, %s, %s %s' % (v(vHp), v(aH), sWs, pld)); seq.append('h')
        if preo: e('global_load_dword %s, %s, %s %s' % (v(29), v(aG0), sWs, preo.replace('_', ' '))); seq.append('preo')
        for t in range(2):
            e('global_load_dwordx4 %s, %s, %s offset:%d%s' % (vr(vW2 + 4 * t, 4), v(aW2), sW2, 896 * t, NT)); seq.append('w2_%d' % t); gapf()
        for t in range(4):
            e('global_load_dwordx4 %s, %s, %s offset:%d%s' % (vr(vWo + 4 * t, 4), v(aWo), sWo, 896 * t, NT)); seq.append('wo_%d' % t); gapf()
    def waitfor(name): e('s_waitcnt vmcnt(%d)' % (len(seq) - 1 - seq.index(name)))
    for i in range(kfirst): kload(i)
    for r in range(1, 4):
        e('s_add_u32 s%d, s8, 0x%x' % (sPn[r - 1], 0x2000 * r)); e('s_addc_u32 s%d, s9, 0' % (sPn[r - 1] + 1))
    stamp('Kiss')
    e('v_and_b32 %s, 63, v0' % v(t_l))
    e('s_cmp_lt_u32 %s, 28' % sC)
    e('s_cselect_b32 %s, -1, 0' % sMF)
    e('s_lshl_b32 %s, %s, 9' % (sA, sH))
    e('s_and_b32 %s, %s, 8' % (sB, sC)); e('s_lshl_b32 %s, %s, 5' % (sB, sB)); e('s_add_u32 %s, %s, %s' % (sA, sA, sB))
    e('s_and_b32 %s, %s, 16' % (sB, sC)); e('s_lshl3_add_u32 %s, %s, %s' % (sA, sB, sA))
    e('s_and_b32 %s, %s, 3' % (sB, sC)); e('s_lshl_b32 %s, %s, 5' % (sB, sB)); e('s_add_u32 %s, %s, %s' % (sA, sA, sB))
    e('s_and_b32 %s, %s, 4' % (sB, sC)); e('s_add_u32 %s, %s, %s' % (sA, sA, sB))
    e('s_mul_i32 %s, %s, 896' % (sA, sA))
    e('s_lshl_b32 %s, %s, 4' % (sB, sW))
    e('v_add_u32 %s, %s, %s' % (v(tc), sB, v(t_j)))
    e('v_min_u32 %s, 55, %s' % (v(tc), v(tc)))
    e('v_lshlrev_b32 %s, 4, %s' % (v(tc), v(tc)))
    e('v_mul_u32_u24 %s, %d, %s' % (v(td), 896 * 2 // 16, v(t_s)))
    e('v_lshl_add_u32 %s, %s, 2, %s' % (v(aWo), v(td), v(tc)))
    e('v_add_u32 %s, %s, %s' % (v(aWo), sA, v(aWo)))
    e('s_mul_i32 %s, s2, %d' % (sA, 8 * 896))
    e('v_add3_u32 %s, %s, %s, %s' % (v(aW2), v(td), v(tc), sA))
    e('v_and_b32 %s, %s, %s' % (v(aW2), sMF, v(aW2)))
    e('s_lshl_b32 %s, %s, 11' % (sA, sC)); e('s_lshl_b32 %s, %s, 5' % (sB, sH)); e('s_add_u32 %s, %s, %s' % (sA, sA, sB))
    e('s_and_b32 %s, %s, %s' % (sA, sA, sMF)); e('s_add_u32 %s, %s, %d' % (sA, sA, WS_H))
    e('v_lshl_add_u32 %s, v3, 8, %s' % (v(aH), sA))
    e('v_lshl_add_u32 %s, v2, 2, %s' % (v(aH), v(aH)))
    e('s_lshl_b32 %s, s2, 4' % sA); e('s_and_b32 %s, %s, %s' % (sA, sA, sMF))
    e('v_lshl_add_u32 %s, v2, 1, %s' % (v(vB1), sA))
    e('s_lshl_b32 %s, %s, 17' % (sA, sH)); e('s_lshl_b32 %s, %s, 12' % (sB, sC)); e('s_add_u32 %s, %s, %s' % (sA, sA, sB))
    e('s_add_u32 %s, %s, %d' % (sA, sA, WS_O))
    e('v_lshl_add_u32 %s, v0, 4, %s' % (v(aG), sA))
    e('v_mov_b32 %s, %s' % (v(aG0), v(aG)))
    e('s_lshl_b32 %s, s2, 6' % sA); e('s_lshl_b32 %s, %s, 17' % (sB, sW)); e('s_add_u32 %s, %s, %s' % (sA, sA, sB))
    e('s_add_u32 %s, %s, %d' % (sA, sA, WS_R))
    e('v_and_b32 %s, 3, v0' % v(tc))
    e('v_lshl_add_u32 %s, %s, 4, %s' % (v(aR), v(tc), sA))
    e('v_and_b32 %s, 28, v0' % v(tc))
    e('v_lshl_add_u32 %s, %s, 12, %s' % (v(aR), v(tc), v(aR)))
    masks(vM, tc, td)
    e('v_mov_b32 %s, 0xff' % v(vFF))
    e('s_mov_b32 %s, 0xffff0000' % sHi)
    e('s_mov_b32 %s, %s' % (sCexp, hx(f2u(math.log2(math.e) / 16.0))))
    e('s_lshl_b32 %s, %s, 8' % (sA, sW))
    e('v_lshl_add_u32 %s, v3, 4, %s' % (v(l_qw), sA))
    e('v_and_b32 %s, 8, v0' % v(tc)); e('v_add_u32 %s, %s, %s' % (v(l_qw), v(l_qw), v(tc)))
    e('v_and_b32 %s, 16, v0' % v(td)); e('v_lshl_add_u32 %s, %s, 3, %s' % (v(l_qw), v(td), v(l_qw)))
    e('v_bfe_u32 %s, v0, 5, 1' % v(td)); e('v_lshl_add_u32 %s, %s, 2, %s' % (v(l_qw), v(td), v(l_qw)))
    e('s_and_b32 %s, %s, 2' % (sA, sW)); e('s_lshl_b32 %s, %s, 6' % (sA, sA))
    e('v_xor_b32 %s, %s, %s' % (v(l_qw), sA, v(l_qw)))
    e('v_mul_u32_u24 %s, %d, %s' % (v(l_qr), (512 + 128) // 8, v(tc)))
    e('v_and_b32 %s, 1, v0' % v(td)); e('v_lshl_add_u32 %s, %s, 6, %s' % (v(l_qr), v(td), v(l_qr)))
    e('v_add_u32 %s, %s, %s' % (v(l_qr), v(l_qr), v(t_s)))
    e('s_and_b32 %s, %s, 3' % (sA, sC)); e('s_lshl_b32 %s, %s, 7' % (sA, sA))
    e('v_xor_b32 %s, %s, %s' % (v(l_qr), sA, v(l_qr)))
    for t in range(1, 4): e('v_xor_b32 %s, 0x%x, %s' % (v(l_qr + t), t << 7, v(l_qr)))
    e('s_lshl_b32 %s, %s, 2' % (sA, sW))
    e('v_lshl_add_u32 %s, %s, 2, %s' % (v(l_ml), v(tc), sA))
    e('s_lshl_b32 %s, %s, 1' % (sA, sW)); e('s_and_b32 %s, %s, 1' % (sB, sC)); e('s_add_u32 %s, %s, %s' % (sA, sA, sB)); e('s_lshl_b32 %s, %s, 10' % (sA, sA))
    e('v_lshl_add_u32 %s, %s, 4, %s' % (v(l_ow), v(t_l), sA))
    e('v_xor_b32 %s, 0x400, %s' % (v(l_ow + 1), v(l_ow)))
    e('v_lshlrev_b32 %s, 3, v0' % v(l_or))
    e('s_and_b32 %s, %s, 1' % (sA, sW)); e('s_lshl_b32 %s, %s, 5' % (sA, sA))
    e('v_mov_b32 %s, %s' % (v(l_mr), sA))
    e('v_lshrrev_b32 %s, 3, v0' % v(tc))
    e('v_mul_u32_u24 %s, 144, %s' % (v(l_gw), v(tc)))
    e('v_lshl_add_u32 %s, v3, 4, %s' % (v(l_gw), v(l_gw)))
    e('v_mul_u32_u24 %s, 144, v3' % v(l_gr))
    e('v_lshl_add_u32 %s, v2, 4, %s' % (v(l_gr), v(l_gr)))
    e('s_waitcnt lgkmcnt(0)')
    tagcalc()
    e('v_and_b32 %s, 24, v0' % v(tc))
    e('v_bfe_u32 %s, %s, %s, 8' % (v(vTh), sT, v(tc)))
    e('s_mov_b32 %s, %d' % (sCnt, spin_cap))
    e('v_mov_b32 %s, 0' % v(vFl))
    e('s_barrier')
    for i in range(kfirst, 8): kload(i)
    e('global_load_ushort %s, %s, %s %s' % (v(vB1), v(vB1), sB1, small)); seq.append('b1')
    if prewrite: e('global_store_dwordx4 %s, %s, %s' % (v(aO), vr(vZ, 4), sWs)); seq.append('pw')
    for i in range(pollpos): vload(i)
    if pollgate: waitfor(pollgate)
    qpoll(); seq += ['q0', 'q1']
    for i in range(pollpos, 8): vload(i)
    stamp('Viss')
    if wopos == 'afterV': woissue()
    elif wopos in seq: waitfor(wopos); woissue()
    waitfor('q1')
    stamp('qarr')
    lab('L_qchk')
    for k in range(8): e('v_xor_b32 %s, %s, %s' % (v(vG + k), sTq if (k & 3) == 0 else sTb[k & 3], v(vG + k)))
    e('v_or3_b32 %s, %s, %s, %s' % (v(tc), v(vG + 1), v(vG + 2), v(vG + 3)))
    e('v_or3_b32 %s, %s, %s, %s' % (v(tc), v(tc), v(vG + 5), v(vG + 6)))
    e('v_or_b32 %s, %s, %s' % (v(td), v(vG), v(vG + 4)))
    e('v_or3_b32 %s, %s, %s, %s' % (v(vZ), v(tc), v(vG + 7), v(td)))
    e('v_and_b32 %s, %s, %s' % (v(vZ), v(vFF), v(vZ)))
    e('v_cmp_ne_u32 vcc, 0, %s' % v(vZ))
    e('s_cbranch_vccnz L_qslow')
    lab('L_qok')
    e('v_pk_add_f32 %s, %s, %s' % (vr(vG, 2), vr(vG, 2), vr(vG + 4, 2)))
    e('v_pk_add_f32 %s, %s, %s' % (vr(vG + 2, 2), vr(vG + 2, 2), vr(vG + 6, 2)))
    e('ds_write_b32 %s, %s offset:%d' % (v(l_ml), v(vFl), FL))
    e('v_permlane32_swap_b32 %s, %s' % (v(vG), v(vG + 2)))
    e('v_permlane32_swap_b32 %s, %s' % (v(vG + 1), v(vG + 3)))
    e('v_pk_add_f32 %s, %s, %s' % (vr(vG, 2), vr(vG, 2), vr(vG + 2, 2)))
    e('v_cvt_pk_bf16_f32 %s, %s, %s' % (v(vG), v(vG), v(vG + 1)))
    e('ds_write_b32 %s, %s offset:%d' % (v(l_qw), v(vG), QB))
    e('s_waitcnt lgkmcnt(0)')
    e('s_barrier')
    for t in range(4): e('ds_read_b128 %s, %s offset:%d' % (vr(vQB + 4 * t, 4), v(l_qr + t), QB))
    e('ds_read_b128 %s, %s offset:%d' % (vr(vFl, 4), v(vZ + 1), FL))
    if wopos == 'bar1': woissue()
    for t in range(4):
        e('s_waitcnt lgkmcnt(%d)' % (4 - t))
        for o in range(2):
            e('v_mfma_f32_16x16x32_bf16 %s, %s, %s, %s' % (vr(vD + 4 * o, 4), vr(vKk + 16 * o + 4 * t, 4), vr(vQB + 4 * t, 4), '0' if t == 0 else vr(vD + 4 * o, 4)))
    e('s_waitcnt lgkmcnt(0)')
    e('v_or3_b32 %s, %s, %s, %s' % (v(vFl), v(vFl), v(vFl + 1), v(vFl + 2)))
    e('v_or_b32 %s, %s, %s' % (v(vFl), v(vFl), v(vFl + 3)))
    e('v_add_u32 %s, %s, %s' % (v(aO), v(aO), v(vFl)))
    e('v_add_u32 %s, %s, %s' % (v(aG), v(aG), v(vFl)))
    e('v_readfirstlane_b32 %s, %s' % (sNU, v(vFl)))
    sc = vG; m0, m1 = vG + 4, vG + 5
    for r in range(4): e('v_mov_b32_dpp %s, %s quad_perm:[1,1,3,3] %s' % (v(sc + r), v(vD + 2 * r + 1), FULL))
    for r in range(4): e('v_add_f32_dpp %s, %s, %s quad_perm:[0,0,2,2] %s' % (v(sc + r), v(vD + 2 * r), v(sc + r), FULL))
    e('v_cvt_pk_bf16_f32 %s, %s, %s' % (v(sc + 1), v(sc), v(sc + 1)))
    e('v_cvt_pk_bf16_f32 %s, %s, %s' % (v(sc + 3), v(sc + 2), v(sc + 3)))
    e('v_lshlrev_b32 %s, 16, %s' % (v(sc), v(sc + 1)))
    e('v_and_b32 %s, %s, %s' % (v(sc + 1), sHi, v(sc + 1)))
    e('v_lshlrev_b32 %s, 16, %s' % (v(sc + 2), v(sc + 3)))
    e('v_and_b32 %s, %s, %s' % (v(sc + 3), sHi, v(sc + 3)))
    e('v_max3_f32 %s, %s, %s, %s' % (v(m0), v(sc), v(sc + 1), v(sc + 2)))
    e('v_max_f32 %s, %s, %s' % (v(m1), v(m0), v(sc + 3)))
    e('v_max_f32 %s, %s, %s' % (v(m0), v(m0), v(sc + 3)))
    e('v_permlane32_swap_b32 %s, %s' % (v(m0), v(m1)))
    e('v_max_f32 %s, %s, %s' % (v(tc), v(m0), v(m1)))
    e('v_max_f32 %s, %s, %s' % (v(m1), v(m0), v(m1)))
    e('v_permlane16_swap_b32 %s, %s' % (v(tc), v(m1)))
    e('v_max_f32 %s, %s, %s' % (v(m0), v(tc), v(m1)))
    e('v_mul_f32 %s, %s, %s' % (v(m0), sCexp, v(m0)))
    for r in range(4): e('v_fma_f32 %s, %s, %s, -%s' % (v(sc + r), v(sc + r), sCexp, v(m0)))
    for r in range(4): e('v_exp_f32 %s, %s' % (v(sc + r), v(sc + r)))
    pk = vG + 8
    def pv(r):
        for hf in range(2):
            waitfor('v%d' % (2 * r + hf))
            e('v_mfma_f32_16x16x32_bf16 %s, %s, %s, %s' % (vr(vD + 4 * hf, 4), vr(vA + 4 * r, 4), vr(vVv + 8 * r + 4 * hf, 4), '0' if r == 0 else vr(vD + 4 * hf, 4)))
    for r in range(4):
        e('v_cvt_pk_bf16_f32 %s, %s, %s' % (v(pk + r), v(sc + r), v(sc + r)))
        for k in range(4): e('v_and_b32 %s, %s, %s' % (v(vA + 4 * r + k), v(pk + r), v(vM + k)))
        if 0 < r and 2 * r <= pollpos: pv(r - 1)
    done = max(0, min(3, pollpos // 2))
    ls, l2 = vG + 5, vG + 6
    e('v_add_f32 %s, %s, %s' % (v(ls), v(sc), v(sc + 1)))
    e('v_add_f32 %s, %s, %s' % (v(tc), v(sc + 2), v(sc + 3)))
    e('v_add_f32 %s, %s, %s' % (v(l2), v(ls), v(tc)))
    e('v_add_f32 %s, %s, %s' % (v(ls), v(ls), v(tc)))
    e('v_permlane32_swap_b32 %s, %s' % (v(ls), v(l2)))
    e('v_add_f32 %s, %s, %s' % (v(tc), v(ls), v(l2)))
    e('v_add_f32 %s, %s, %s' % (v(l2), v(ls), v(l2)))
    e('v_permlane16_swap_b32 %s, %s' % (v(tc), v(l2)))
    e('v_add_f32 %s, %s, %s' % (v(ls), v(tc), v(l2)))
    e('s_mov_b64 exec, 0x101')
    e('ds_write_b32 %s, %s offset:%d' % (v(l_ml), v(m0), ML))
    e('ds_write_b32 %s, %s offset:%d' % (v(l_ml), v(ls), ML + 16))
    e('s_mov_b64 exec, -1')
    stamp('smax')
    if wopos == 'smax': woissue()
    for r in range(done, 4): pv(r)
    stamp('Varr')
    if wopos == 'Varr': woissue()
    e('ds_write_b128 %s, %s offset:%d' % (v(l_ow), vr(vD, 4), OL))
    e('ds_write_b128 %s, %s offset:%d' % (v(l_ow + 1), vr(vD + 4, 4), OL))
    e('s_waitcnt lgkmcnt(0)')
    e('s_barrier')
    mm, ll, oo = vA, vA + 4, vA + 8
    e('ds_read_b128 %s, %s offset:%d' % (vr(mm, 4), v(l_mr), ML))
    e('ds_read_b128 %s, %s offset:%d' % (vr(ll, 4), v(l_mr), ML + 16))
    for k in range(4): e('ds_read_b64 %s, %s offset:%d' % (vr(oo + 2 * k, 2), v(l_or), OL + 2048 * k))
    pb = vG; mx = vG + 4; lt = vG + 5; rr = vG + 6
    e('v_mov_b32 %s, %s' % (v(pb + 3), sT))
    e('s_cmp_eq_u32 %s, 0' % sNU)
    e('s_waitcnt lgkmcnt(5)')
    e('v_max3_f32 %s, %s, %s, %s' % (v(mx), v(mm), v(mm + 1), v(mm + 2)))
    e('v_max_f32 %s, %s, %s' % (v(mx), v(mx), v(mm + 3)))
    for k in range(4): e('v_sub_f32 %s, %s, %s' % (v(mm + k), v(mm + k), v(mx)))
    for k in range(4): e('v_exp_f32 %s, %s' % (v(mm + k), v(mm + k)))
    e('s_waitcnt lgkmcnt(4)')
    e('v_mul_f32 %s, %s, %s' % (v(lt), v(mm), v(ll)))
    for k in range(1, 4): e('v_fmac_f32 %s, %s, %s' % (v(lt), v(mm + k), v(ll + k)))
    e('v_rcp_f32 %s, %s' % (v(rr), v(lt)))
    e('v_log_f32 %s, %s' % (v(lt), v(lt)))
    e('s_waitcnt lgkmcnt(0)')
    e('v_pk_mul_f32 %s, %s, %s op_sel_hi:[1,0]' % (vr(pb, 2), vr(oo, 2), vr(mm, 2)))
    e('v_pk_fma_f32 %s, %s, %s, %s op_sel:[0,1,0] op_sel_hi:[1,1,1]' % (vr(pb, 2), vr(oo + 2, 2), vr(mm, 2), vr(pb, 2)))
    e('v_pk_fma_f32 %s, %s, %s, %s op_sel_hi:[1,0,1]' % (vr(pb, 2), vr(oo + 4, 2), vr(mm + 2, 2), vr(pb, 2)))
    e('v_pk_fma_f32 %s, %s, %s, %s op_sel:[0,1,0] op_sel_hi:[1,1,1]' % (vr(pb, 2), vr(oo + 6, 2), vr(mm + 2, 2), vr(pb, 2)))
    e('v_add_f32 %s, %s, %s' % (v(pb + 2), v(mx), v(lt)))
    e('v_pk_mul_f32 %s, %s, %s op_sel_hi:[1,0]' % (vr(pb, 2), vr(pb, 2), vr(rr, 2)))
    e('s_cbranch_scc0 L_oslow')
    e('global_store_dwordx4 %s, %s, %s' % (v(aO), vr(pb, 4), sWs))
    lab('L_opub')
    seq.append('opub')
    stamp('opub')
    if wopos == 'opub': woissue()
    e('global_load_dwordx4 %s, %s, %s sc1' % (vr(vG + 12, 4), v(aG), sWs)); seq.append('g')
    vHv = vG + 8; h2 = vG + 9; h3 = vG + 10; hv = vHv
    e('v_mov_b32 %s, 0' % v(hv))
    e('s_cmp_lg_u32 %s, 0' % sMF)
    e('s_cbranch_scc0 L_hdone')
    e('s_mov_b32 %s, %d' % (sCnt, spin_cap))
    waitfor('h')
    lab('L_hchk')
    e('v_xor_b32 %s, %s, %s' % (v(hv), v(vTh), v(vHp)))
    e('v_and_b32 %s, %s, %s' % (v(h2), v(vFF), v(hv)))
    e('v_cmp_ne_u32 vcc, 0, %s' % v(h2))
    e('s_cbranch_vccnz L_hretry')
    lab('L_hok')
    for m in DP: e('v_add_f32_dpp %s, %s, %s %s %s' % (v(hv), v(hv), v(hv), m, FULL))
    e('v_lshlrev_b32 %s, 16, %s' % (v(vB1), v(vB1)))
    e('v_cvt_pk_bf16_f32 %s, %s, %s' % (v(hv), v(hv), v(hv)))
    e('v_and_b32 %s, %s, %s' % (v(hv), sHi, v(hv)))
    e('v_add_f32 %s, %s, %s' % (v(hv), v(hv), v(vB1)))
    e('v_cvt_pk_bf16_f32 %s, %s, %s' % (v(hv), v(hv), v(hv)))
    e('v_and_b32 %s, %s, %s' % (v(hv), sHi, v(hv)))
    k1 = -2.0 * math.log2(math.e) * math.sqrt(2.0 / math.pi)
    e('v_mul_f32 %s, %s, %s' % (v(h2), v(hv), v(hv)))
    e('v_mov_b32 %s, %s' % (v(h3), hx(f2u(k1))))
    e('v_fmac_f32 %s, %s, %s' % (v(h3), hx(f2u(k1 * 0.044715)), v(h2)))
    e('v_mul_f32 %s, %s, %s' % (v(h3), v(h3), v(hv)))
    e('v_exp_f32 %s, %s' % (v(h3), v(h3)))
    e('v_add_f32 %s, 1.0, %s' % (v(h3), v(h3)))
    e('v_rcp_f32 %s, %s' % (v(h3), v(h3)))
    e('v_mul_f32 %s, %s, %s' % (v(hv), v(hv), v(h3)))
    e('v_cvt_pk_bf16_f32 %s, %s, %s' % (v(hv), v(hv), v(hv)))
    lab('L_hdone')
    for k in range(4): e('v_and_b32 %s, %s, %s' % (v(vA + k), v(vHv), v(vM + k)))
    for k in range(4): e('v_and_b32_dpp %s, %s, %s row_ror:8 %s' % (v(vA + 4 + k), v(vHv), v(vM + k), FULL))
    e('s_mov_b32 %s, %d' % (sCnt, spin_cap))
    e('s_waitcnt vmcnt(0)')
    e('v_mfma_f32_16x16x32_bf16 %s, %s, %s, 0' % (vr(vAcc, 4), vr(vA, 4), vr(vW2, 4)))
    e('v_mfma_f32_16x16x32_bf16 %s, %s, %s, %s' % (vr(vAcc, 4), vr(vA + 4, 4), vr(vW2 + 4, 4), vr(vAcc, 4)))
    stamp('wo')
    lab('L_ochk')
    e('v_cmp_ne_u32 vcc, %s, %s' % (sT, v(vG + 15)))
    e('s_cbranch_vccz L_ook')
    e('global_load_dwordx4 %s, %s, %s sc1' % (vr(vG + 12, 4), v(aG), sWs))
    e('s_sub_u32 %s, %s, 1' % (sCnt, sCnt))
    e('s_waitcnt vmcnt(0)')
    e('s_cbranch_scc0 L_ochk')
    lab('L_ook')
    e('ds_write_b128 %s, %s offset:%d' % (v(l_gw), vr(vG + 12, 4), G2))
    e('s_waitcnt lgkmcnt(0)')
    e('s_barrier')
    stamp('ogath')
    gg = vQB
    for i in range(4): e('ds_read_b128 %s, %s offset:%d' % (vr(gg + 4 * i, 4), v(l_gr), G2 + 1152 * i))
    mx = vG; s0 = vG + 1; n0 = vG + 2; n1 = vG + 3
    e('s_cmp_eq_u32 %s, 3' % sW)
    e('s_cselect_b32 %s, 0x00ff00ff, -1' % sA)
    e('s_waitcnt lgkmcnt(0)')
    e('v_max3_f32 %s, %s, %s, %s' % (v(mx), v(gg + 2), v(gg + 6), v(gg + 10)))
    e('v_max_f32 %s, %s, %s' % (v(mx), v(mx), v(gg + 14)))
    for m in DP: e('v_max_f32_dpp %s, %s, %s %s %s' % (v(mx), v(mx), v(mx), m, FULL))
    for i in range(4): e('v_sub_f32 %s, %s, %s' % (v(gg + 4 * i + 2), v(gg + 4 * i + 2), v(mx)))
    for i in range(4): e('v_exp_f32 %s, %s' % (v(gg + 4 * i + 2), v(gg + 4 * i + 2)))
    e('v_add_f32 %s, %s, %s' % (v(s0), v(gg + 2), v(gg + 6)))
    e('v_pk_mul_f32 %s, %s, %s op_sel_hi:[1,0]' % (vr(n0, 2), vr(gg, 2), vr(gg + 2, 2)))
    e('v_add_f32 %s, %s, %s' % (v(s0), v(s0), v(gg + 10)))
    e('v_pk_fma_f32 %s, %s, %s, %s op_sel_hi:[1,0,1]' % (vr(n0, 2), vr(gg + 4, 2), vr(gg + 6, 2), vr(n0, 2)))
    e('v_add_f32 %s, %s, %s' % (v(s0), v(s0), v(gg + 14)))
    e('v_pk_fma_f32 %s, %s, %s, %s op_sel_hi:[1,0,1]' % (vr(n0, 2), vr(gg + 8, 2), vr(gg + 10, 2), vr(n0, 2)))
    e('v_pk_fma_f32 %s, %s, %s, %s op_sel_hi:[1,0,1]' % (vr(n0, 2), vr(gg + 12, 2), vr(gg + 14, 2), vr(n0, 2)))
    for m in DP:
        for r in (s0, n0, n1): e('v_add_f32_dpp %s, %s, %s %s %s' % (v(r), v(r), v(r), m, FULL))
    e('v_rcp_f32 %s, %s' % (v(s0), v(s0)))
    e('v_mul_f32 %s, %s, %s' % (v(n0), v(n0), v(s0)))
    e('v_mul_f32 %s, %s, %s' % (v(n1), v(n1), v(s0)))
    e('v_cvt_pk_bf16_f32 %s, %s, %s' % (v(n0), v(n0), v(n0)))
    e('v_cvt_pk_bf16_f32 %s, %s, %s' % (v(n1), v(n1), v(n1)))
    for t in range(4):
        src = n0 if (t & 1) == 0 else n1
        for k in range(4):
            if t < 2: e('v_and_b32 %s, %s, %s' % (v(vA + 4 * t + k), v(src), v(vM + k)))
            else: e('v_and_b32_dpp %s, %s, %s row_ror:8 %s' % (v(vA + 4 * t + k), v(src), v(vM + k), FULL))
        if t > 0: e('v_mfma_f32_16x16x32_bf16 %s, %s, %s, %s' % (vr(vAcc, 4), vr(vA + 4 * (t - 1), 4), vr(vWo + 4 * (t - 1), 4), vr(vAcc, 4)))
    e('v_mfma_f32_16x16x32_bf16 %s, %s, %s, %s' % (vr(vAcc, 4), vr(vA + 12, 4), vr(vWo + 12, 4), vr(vAcc, 4)))
    e('s_mov_b32 exec_lo, %s' % sA); e('s_mov_b32 exec_hi, 0')
    for k in range(4): e('v_bfi_b32 %s, %s, %s, %s' % (v(vAcc + k), v(vFF), sTb[k], v(vAcc + k)))
    e('global_store_dwordx4 %s, %s, %s sc1' % (v(aR), vr(vAcc, 4), sWs))
    e('s_mov_b64 exec, -1')
    stamp('rpub')
    e('s_cmp_lg_u32 %s, 0' % sMF)
    e('s_cbranch_scc1 L_fin')
    sRho = sKV
    e('s_sub_u32 %s, s2, 224' % sRho)
    e('s_and_b32 %s, %s, 26' % (sA, sRho))
    e('s_cmp_eq_u32 %s, 26' % sA)
    e('s_cbranch_scc1 L_fin')
    aF = aK; aC = aV; l_fw = l_qw; l_fr = l_ml
    e('s_lshl_b32 %s, %s, 14' % (sA, sRho)); e('s_add_u32 %s, %s, %d' % (sA, sA, WS_R + 4096))
    e('v_lshl_add_u32 %s, v0, 4, %s' % (v(aF), sA))
    e('v_add_u32 %s, 0x2000, %s' % (v(aF + 1), v(aF)))
    RS = [vKk + 16 * d for d in range(4)]
    def rsweep(d):
        for i in range(4): e('global_load_dwordx4 %s, %s, %s offset:%d sc1' % (vr(RS[d] + 4 * i, 4), v(aF + (i >> 1)), sWs, -4096 + 4096 * (i & 1)))
    e('s_lshr_b32 %s, %s, 3' % (sA, sRho)); e('s_lshl_b32 %s, %s, 8' % (sA, sA))
    e('s_and_b32 %s, %s, 3' % (sB, sRho)); e('s_lshl_b32 %s, %s, 6' % (sB, sB)); e('s_add_u32 %s, %s, %s' % (sA, sA, sB))
    e('s_and_b32 %s, %s, 4' % (sB, sRho)); e('s_lshl1_add_u32 %s, %s, %s' % (sA, sB, sA))
    e('v_and_b32 %s, 3, v0' % v(l_fr))
    e('v_lshlrev_b32 %s, 4, %s' % (v(l_fr), v(l_fr)))
    e('v_add_u32 %s, %s, %s' % (v(aC), sA, v(l_fr)))
    xq, bq = vA, vA + 2
    e('global_load_dwordx2 %s, %s, %s' % (vr(xq, 2), v(aC), sX))
    e('global_load_dwordx2 %s, %s, %s' % (vr(bq, 2), v(aC), sB2))
    for d in range(rdepth - 1): rsweep(d)
    e('s_lshl_b32 %s, %s, 6' % (sA, sW))
    e('v_lshrrev_b32 %s, 2, %s' % (v(l_fw), v(t_s)))
    e('v_add3_u32 %s, %s, %s, %s' % (v(l_fw), v(l_fw), v(l_fr), sA))
    e('s_mov_b32 %s, %d' % (sCnt, spin_cap))
    lab('L_rchk')
    for d in range(rdepth):
        rsweep((d + rdepth - 1) % rdepth)
        e('s_waitcnt vmcnt(%d)' % (4 * (rdepth - 1)))
        for k in range(16): e('v_xor_b32 %s, %s, %s' % (v(vG + k), sTb[k & 3], v(RS[d] + k)))
        e('v_or3_b32 %s, %s, %s, %s' % (v(tc), v(vG), v(vG + 1), v(vG + 2)))
        e('v_or3_b32 %s, %s, %s, %s' % (v(td), v(vG + 3), v(vG + 4), v(vG + 5)))
        for k in range(6, 14, 4):
            e('v_or3_b32 %s, %s, %s, %s' % (v(tc), v(tc), v(vG + k), v(vG + k + 1)))
            e('v_or3_b32 %s, %s, %s, %s' % (v(td), v(td), v(vG + k + 2), v(vG + k + 3)))
        e('v_or3_b32 %s, %s, %s, %s' % (v(tc), v(tc), v(vG + 14), v(vG + 15)))
        e('v_bitop3_b32 %s, %s, %s, %s bitop3:0xa8' % (v(tc), v(tc), v(td), v(vFF)))
        e('v_cmp_ne_u32 vcc, 0, %s' % v(tc))
        e('s_cbranch_vccz L_rok')
    e('s_sub_u32 %s, %s, 1' % (sCnt, sCnt))
    e('s_cbranch_scc0 L_rchk')
    lab('L_rok')
    stamp('rgath')
    e('v_pk_add_f32 %s, %s, %s' % (vr(vG, 2), vr(vG, 2), vr(vG + 4, 2)))
    e('v_pk_add_f32 %s, %s, %s' % (vr(vG + 2, 2), vr(vG + 2, 2), vr(vG + 6, 2)))
    e('v_pk_add_f32 %s, %s, %s' % (vr(vG + 8, 2), vr(vG + 8, 2), vr(vG + 12, 2)))
    e('v_pk_add_f32 %s, %s, %s' % (vr(vG + 10, 2), vr(vG + 10, 2), vr(vG + 14, 2)))
    e('v_pk_add_f32 %s, %s, %s' % (vr(vG, 2), vr(vG, 2), vr(vG + 8, 2)))
    e('v_pk_add_f32 %s, %s, %s' % (vr(vG + 2, 2), vr(vG + 2, 2), vr(vG + 10, 2)))
    e('v_permlane32_swap_b32 %s, %s' % (v(vG), v(vG + 2)))
    e('v_permlane32_swap_b32 %s, %s' % (v(vG + 1), v(vG + 3)))
    e('v_pk_add_f32 %s, %s, %s' % (vr(vG, 2), vr(vG, 2), vr(vG + 2, 2)))
    e('v_permlane16_swap_b32 %s, %s' % (v(vG), v(vG + 1)))
    e('v_add_f32 %s, %s, %s' % (v(vG), v(vG), v(vG + 1)))
    e('v_add_f32_dpp %s, %s, %s row_ror:4 %s' % (v(vG), v(vG), v(vG), FULL))
    e('v_add_f32_dpp %s, %s, %s row_ror:8 %s' % (v(vG), v(vG), v(vG), FULL))
    e('s_mov_b32 exec_lo, 0x000f000f'); e('s_mov_b32 exec_hi, 0x000f000f')
    e('ds_write_b32 %s, %s offset:%d' % (v(l_fw), v(vG), F3))
    e('s_mov_b64 exec, -1')
    xf = vA + 4
    for d in range(2):
        e('v_lshlrev_b32 %s, 16, %s' % (v(xf + 2 * d), v(xq + d)))
        e('v_and_b32 %s, %s, %s' % (v(xf + 2 * d + 1), sHi, v(xq + d)))
        e('v_lshlrev_b32 %s, 16, %s' % (v(xf + 4 + 2 * d), v(bq + d)))
        e('v_and_b32 %s, %s, %s' % (v(xf + 4 + 2 * d + 1), sHi, v(bq + d)))
    e('s_cmp_eq_u32 %s, 0' % sW)
    e('s_waitcnt lgkmcnt(0)')
    e('s_barrier')
    e('s_cbranch_scc0 L_fin')
    for k in range(4): e('ds_read_b128 %s, %s offset:%d' % (vr(vG + 4 * k, 4), v(l_fr), F3 + 64 * k))
    e('v_pk_add_f32 %s, %s, %s' % (vr(xf, 2), vr(xf, 2), vr(xf + 4, 2)))
    e('v_pk_add_f32 %s, %s, %s' % (vr(xf + 2, 2), vr(xf + 2, 2), vr(xf + 6, 2)))
    e('s_mov_b64 exec, 15')
    for k in range(4):
        e('s_waitcnt lgkmcnt(%d)' % (3 - k))
        e('v_pk_add_f32 %s, %s, %s' % (vr(xf, 2), vr(xf, 2), vr(vG + 4 * k, 2)))
        e('v_pk_add_f32 %s, %s, %s' % (vr(xf + 2, 2), vr(xf + 2, 2), vr(vG + 4 * k + 2, 2)))
    e('v_cvt_pk_bf16_f32 %s, %s, %s' % (v(xf), v(xf), v(xf + 1)))
    e('v_cvt_pk_bf16_f32 %s, %s, %s' % (v(xf + 1), v(xf + 2), v(xf + 3)))
    e('global_store_dwordx2 %s, %s, %s %s' % (v(aC), vr(xf, 2), sOut, outflag))
    e('s_cmp_eq_u32 %s, 0' % sRho)
    e('s_cbranch_scc0 L_fin')
    e('s_mov_b64 exec, 1')
    e('v_mov_b32 %s, %d' % (v(tc), WS_E))
    e('v_mov_b32 %s, %s' % (v(td), sT))
    e('global_store_dword %s, %s, %s %s' % (v(tc), v(td), sWs, outflag))
    lab('L_fin')
    if stamps:
        e('s_mov_b64 exec, -1')
        e('s_waitcnt vmcnt(0)')
        stamp('end')
        e('s_waitcnt lgkmcnt(0)')
        e('s_mov_b64 exec, 1')
        e('s_mul_i32 %s, s2, 5' % sA); e('s_add_u32 %s, %s, %s' % (sA, sA, sW)); e('s_lshl_b32 %s, %s, 6' % (sA, sA))
        e('s_add_u32 %s, %s, %d' % (sA, sA, WS_T))
        e('v_mov_b32 v6, %s' % sA)
        for k in range(len(names)): e('v_mov_b32 v%d, s%d' % (8 + k, ST0 + 2 * k))
        e('s_getreg_b32 %s, hwreg(HW_REG_XCC_ID)' % sA)
        e('v_mov_b32 v22, %s' % sA); e('v_mov_b32 v23, %s' % sW); e('v_mov_b32 v21, 0')
        for k in range(4): e('global_store_dwordx4 v6, v[%d:%d], %s offset:%d%s' % (8 + 4 * k, 11 + 4 * k, sWs, 16 * k, ' sc1' if diag else ''))
        if diag:
            dn, dw, dstat = diag.split('.')
            k = names.index(gnames.get(dn, dn)); ws_ = [4] if dw == 'G' else [0, 1, 2, 3]
            e('s_cmp_eq_u32 s2, 224'); e('s_cbranch_scc0 L_end')
            e('s_cmp_eq_u32 %s, 0' % sW); e('s_cbranch_scc0 L_end')
            e('s_mov_b64 exec, -1')
            e('s_mov_b32 %s, 100000' % sCnt)
            lab('L_d0')
            e('s_memrealtime s[52:53]'); e('s_waitcnt lgkmcnt(0)')
            e('s_sub_u32 s52, s52, s%d' % ST0)
            e('s_sub_u32 %s, %s, 1' % (sCnt, sCnt)); e('s_cbranch_scc1 L_end')
            e('s_cmp_lt_u32 s52, 4000'); e('s_cbranch_scc1 L_d0')
            e('v_and_b32 v6, 63, v0'); e('v_mul_u32_u24 v6, 320, v6'); e('v_add_u32 v6, %d, v6' % WS_T)
            e('v_mov_b32 v8, -1'); e('v_mov_b32 v9, 0'); e('v_mov_b32 v12, 0')
            for j in range(4):
                for w_ in range(5):
                    e('global_load_dword v10, v6, %s offset:%d sc1' % (sWs, 64 * w_))
                    e('global_load_dword v11, v6, %s offset:%d sc1' % (sWs, 64 * w_ + 4 * k))
                    e('s_waitcnt vmcnt(0)')
                    e('v_min_u32 v8, v8, v10')
                    if w_ in ws_:
                        e('v_max_u32 v9, v9, v11'); e('v_subrev_u32 v11, s%d, v11' % ST0); e('v_add_u32 v12, v12, v11')
                e('v_add_u32 v6, %d, v6' % (320 * 64))
            e('s_mov_b32 %s, -1' % sA); e('s_mov_b32 %s, 0' % sB); e('s_mov_b32 s54, 0')
            for l in range(64):
                e('v_readlane_b32 s52, v8, %d' % l); e('v_readlane_b32 s53, v9, %d' % l); e('v_readlane_b32 s55, v12, %d' % l)
                e('s_min_u32 %s, %s, s52' % (sA, sA)); e('s_max_u32 %s, %s, s53' % (sB, sB)); e('s_add_u32 s54, s54, s55')
            if dstat == 'max':
                e('s_sub_u32 %s, %s, %s' % (sB, sB, sA)); e('s_min_u32 %s, %s, 5000' % (sB, sB)); e('s_mul_i32 %s, %s, 100' % (sB, sB))
            elif dstat == 'avg':
                e('s_mul_i32 s54, s54, 100'); e('s_ashr_i32 s54, s54, %d' % (8 if dw == 'G' else 10))
                e('s_sub_u32 s55, s%d, %s' % (ST0, sA)); e('s_mul_i32 s55, s55, 100'); e('s_add_u32 %s, s54, s55' % sB); e('s_min_u32 %s, %s, 500000' % (sB, sB))
            else: e('s_mov_b32 %s, 0' % sB)
            e('s_add_u32 %s, %s, 10000' % (sB, sB))
            e('s_mov_b32 %s, 2000000' % sCnt)
            lab('L_ds')
            e('s_memrealtime s[52:53]'); e('s_waitcnt lgkmcnt(0)')
            e('s_sub_u32 s52, s52, %s' % sA)
            e('s_sub_u32 %s, %s, 1' % (sCnt, sCnt)); e('s_cbranch_scc1 L_end')
            e('s_cmp_lt_u32 s52, %s' % sB); e('s_cbranch_scc1 L_ds')
    lab('L_end')
    e('s_endpgm')
    lab('L_qslow')
    e('v_and_b32 %s, 0xf0, %s' % (v(vZ), v(td)))
    e('v_or3_b32 %s, %s, %s, %s' % (v(vZ), v(tc), v(vG + 7), v(vZ)))
    e('v_and_b32 %s, %s, %s' % (v(vZ), v(vFF), v(vZ)))
    e('v_cmp_ne_u32 vcc, 0, %s' % v(vZ))
    e('s_cbranch_vccnz L_qretry')
    e('v_mov_b32 %s, 0x%x' % (v(vFl), OS_SLOW))
    e('v_and_b32 %s, -16, %s' % (v(vG), v(vG)))
    e('v_and_b32 %s, -16, %s' % (v(vG + 4), v(vG + 4)))
    e('s_branch L_qok')
    lab('L_qretry')
    e('s_sub_u32 %s, %s, 1' % (sCnt, sCnt))
    e('s_cbranch_scc1 L_qok')
    qpoll()
    e('s_waitcnt vmcnt(0)')
    e('s_branch L_qchk')
    lab('L_hretry')
    e('s_sub_u32 %s, %s, 1' % (sCnt, sCnt))
    e('s_cbranch_scc1 L_hok')
    e('global_load_dword %s, %s, %s sc1' % (v(vHp), v(aH), sWs))
    e('s_waitcnt vmcnt(0)')
    e('s_branch L_hchk')
    lab('L_oslow')
    e('global_store_dwordx4 %s, %s, %s sc1' % (v(aO), vr(pb, 4), sWs))
    lab('L_last')
    e('s_branch L_opub')
    body = fix_hazards(L)
    hdr = open('cdna_kernels/%s.s.ref' % NAME).read().split('\n')
    hdr = [x for x in hdr if x.startswith(';') and '@launch' not in x]
    if stamps: hdr = ['; stampnames: ' + ' '.join(names)] + hdr
    out = hdr + ['; @launch grid=(256,1,1) block=(320,1,1) lds=%d' % LDS,
        '.amdgcn_target "amdgcn-amd-amdhsa--gfx950"', '.text', '.globl %s_kernel' % NAME, '.p2align 8',
        '.type %s_kernel,@function' % NAME, '%s_kernel:' % NAME] + body + [
        '.section .rodata,"a"', '.p2align 6', '.amdhsa_kernel %s_kernel' % NAME,
        '  .amdhsa_next_free_vgpr %d' % NV, '  .amdhsa_next_free_sgpr 96', '  .amdhsa_accum_offset %d' % NV,
        '  .amdhsa_group_segment_fixed_size 0', '  .amdhsa_kernarg_size 104', '  .amdhsa_user_sgpr_count 2',
        '  .amdhsa_user_sgpr_kernarg_segment_ptr 1', '  .amdhsa_system_sgpr_workgroup_id_x 1',
        '  .amdhsa_float_denorm_mode_32 3', '.end_amdhsa_kernel', '']
    return '\n'.join(out)

if __name__ == '__main__':
    kw = {}
    for a in sys.argv[2:]:
        k, x = a.split('=')
        try: x = eval(x)
        except Exception: pass
        kw[k] = x
    open(sys.argv[1], 'w').write(gen(**kw))
```

```python
import re

TRANS = ('v_exp_', 'v_log_', 'v_rcp_', 'v_rsq_', 'v_sqrt_', 'v_sin_', 'v_cos_')

def regs_of(tok):
    tok = tok.strip()
    tok = tok.lstrip('-')
    m = re.fullmatch(r'abs\((.*)\)', tok)
    if m: tok = m.group(1)
    tok = tok.strip('|')
    m = re.fullmatch(r'([vsa])(\d+)', tok)
    if m: return {(m.group(1), int(m.group(2)))}
    m = re.fullmatch(r'([vsa])\[(\d+):(\d+)\]', tok)
    if m: return {(m.group(1), i) for i in range(int(m.group(2)), int(m.group(3)) + 1)}
    if tok in ('vcc', 'vcc_lo', 'vcc_hi'): return {('s', 'vcc')}
    if tok in ('exec', 'exec_lo', 'exec_hi'): return {('s', 'exec')}
    if tok == 'm0': return {('s', 'm0')}
    return set()

class Ins:
    def __init__(self, text):
        self.text = text
        code = text.split(';')[0].strip()
        self.label = None
        self.op = None
        self.w = set(); self.r = set()
        self.cls = None
        if not code or code.startswith('.') and not code.endswith(':'):
            self.cls = 'none'; return
        if code.endswith(':'):
            self.label = code[:-1]; self.cls = 'none'; return
        parts = code.split(None, 1)
        self.op = op = parts[0]
        rest = parts[1] if len(parts) > 1 else ''
        ops = []; depth = 0; cur = ''
        for ch in rest:
            if ch in '[(': depth += 1
            if ch in '])': depth -= 1
            if ch == ',' and depth == 0:
                ops.append(cur.strip()); cur = ''
            else: cur += ch
        if cur.strip(): ops.append(cur.strip())
        mods = ''
        if ops:
            last = ops[-1].split(None, 1)
            ops[-1] = last[0]
            if len(last) > 1: mods = last[1]
        self.ops = ops; self.mods = mods
        R = [regs_of(o) for o in ops]
        self.dpp = ('_dpp' in op) or ('row_' in mods) or ('quad_perm' in mods)
        self.sdwa = '_sdwa' in op
        if op.startswith('v_mfma'):
            self.cls = 'mfma'; self.w = R[0]; self.A = R[1]; self.B = R[2]; self.C = R[3]
            self.r = R[1] | R[2] | R[3]
            self.passes = 8 if ('32x32x16' in op or '16x16x4_f32' in op) else (16 if '32x32x2_f32' in op else 4)
            self.sgemm = op.endswith('_f32') and ('x4_f32' in op or 'x2_f32' in op or 'x1_' in op)
        elif op.startswith('v_'):
            self.cls = 'valu'
            if op == 'v_nop': return
            if op.startswith('v_permlane') and 'swap' in op:
                self.w = R[0] | R[1]; self.r = R[0] | R[1]
            elif op.startswith('v_cmp'):
                self.w = R[0]; self.r = set().union(*R[1:])
            elif op.startswith(('v_add_co', 'v_sub_co', 'v_addc_co', 'v_subb_co', 'v_mad_u64')):
                self.w = R[0] | R[1]; self.r = set().union(*R[2:])
            else:
                self.w = R[0]; self.r = set().union(*R[1:]) if len(R) > 1 else set()
                if op.startswith(('v_fmac', 'v_dot2c', 'v_pk_fmac', 'v_writelane')) or self.dpp or self.sdwa:
                    self.r |= R[0]
            self.trans = op.startswith(TRANS)
        elif op.startswith(('global_', 'buffer_', 'flat_')):
            self.cls = 'vmem'
            allr = set().union(*R) if R else set()
            if 'load' in op and 'lds' not in op and 'lds' not in mods.split():
                self.w = R[0]; self.r = set().union(*R[1:])
                if 'd16' in op: self.r |= R[0]
            elif 'atomic' in op and 'sc0' in mods.split() and op.startswith('global_'):
                self.w = R[0]; self.r = set().union(*R[1:])
            else:
                self.r = allr
            self.widestore = ('store' in op) and (op.endswith('x3') or op.endswith('x4'))
            self.sdata = set()
            if self.widestore:
                self.sdata = R[1] if op.startswith(('global_', 'flat_')) else R[0]
            self.ldsdma = ('lds' in op) or ('lds' in mods.split())
        elif op.startswith('ds_'):
            self.cls = 'ds'
            if op.startswith(('ds_read', 'ds_bpermute', 'ds_permute', 'ds_swizzle')) or '_rtn' in op:
                self.w = R[0]; self.r = set().union(*R[1:]) if len(R) > 1 else set()
            else:
                self.r = set().union(*R)
        elif op.startswith('s_'):
            self.cls = 'salu'
            if op.startswith(('s_cmp', 's_cbranch', 's_branch', 's_waitcnt', 's_nop', 's_barrier', 's_endpgm', 's_setprio', 's_sleep', 's_bitcmp')):
                self.r = set().union(*R) if R else set()
            else:
                self.w = R[0] if R else set()
                self.r = set().union(*R[1:]) if len(R) > 1 else set()
                if 'saveexec' in op: self.w |= {('s', 'exec')}
        else:
            raise ValueError('unknown op: ' + text)

    def states(self):
        if self.cls == 'none': return 0
        if self.op == 's_nop': return int(self.ops[0]) + 1
        return 1

def V(s): return {x for x in s if x[0] in 'va'}
def S(s): return {x for x in s if x[0] == 's'}

def need(p, c):
    n = 0
    if p.cls == 'valu':
        vw = V(p.w); sw = S(p.w)
        if c.cls == 'valu':
            if c.dpp and (vw & c.r): n = max(n, 2)
            if c.op.startswith('v_permlane') and (vw & c.r): n = max(n, 2)
            if c.op.startswith(('v_readlane', 'v_readfirstlane')) and (vw & c.r): n = max(n, 1)
            if getattr(p, 'trans', False) and (vw & c.r): n = max(n, 1)
            if (p.sdwa or 'op_sel:' in p.mods) and (vw & (c.r | c.w)): n = max(n, 1)
            if sw & c.r:
                n = max(n, 4 if c.op.startswith(('v_readlane', 'v_writelane')) else 2)
            if ('s', 'vcc') in sw and c.op.startswith('v_div_fmas'): n = max(n, 4)
        if c.cls == 'mfma' and (vw & c.r): n = max(n, 2)
        if c.cls == 'vmem' and (sw & c.r): n = max(n, 5)
        if c.cls in ('vmem', 'ds') and getattr(p, 'trans', False) and (vw & c.r): n = max(n, 1)
    if p.cls == 'mfma':
        k = {4: 0, 8: 1, 16: 2}[p.passes]
        if not p.sgemm:
            full = [8, 12, 20][k]; ovl = [6, 10, 18][k]; war = [3, 7, 15][k]
        else:
            full = [6, 10, 18][k]; ovl = [4, 8, 16][k]; war = 0
        if c.cls == 'mfma':
            if p.w & (c.A | c.B): n = max(n, full)
            if p.w & c.C and not (p.w == c.C and p.passes == c.passes and p.sgemm == c.sgemm): n = max(n, ovl)
            if p.w & c.w and not (p.w & c.C): n = max(n, ovl)
        elif c.cls in ('valu', 'vmem', 'ds'):
            if p.w & (c.r | c.w): n = max(n, full)
            if c.cls == 'valu' and (p.C & c.w): n = max(n, war)
    if p.cls == 'vmem' and getattr(p, 'widestore', False):
        if c.cls in ('valu', 'mfma') and (p.sdata & c.w): n = max(n, 2)
        elif c.cls in ('vmem', 'ds') and (p.sdata & c.w): n = max(n, 1)
    if p.cls == 'salu' and ('s', 'm0') in p.w:
        if c.cls == 'vmem' and c.ldsdma: n = max(n, 1)
    return n

def fix_hazards(lines, verbose=False):
    ins = [Ins(l) for l in lines]
    changed = True
    total = 0
    while changed:
        changed = False
        labels = {x.label: i for i, x in enumerate(ins) if x.label}
        preds = [[] for _ in ins]
        for i, x in enumerate(ins):
            if x.op in ('s_branch',) or (x.op and x.op.startswith('s_cbranch')):
                if x.ops[0] in labels: preds[labels[x.ops[0]]].append(i)
                else: assert x.ops[0].startswith('L_pad'), x.text
            if i + 1 < len(ins) and x.op not in ('s_branch', 's_endpgm'):
                preds[i + 1].append(i)
        for i, c in enumerate(ins):
            if c.cls in ('none', 'salu'): continue
            worst = 0
            stack = [(p, 0) for p in preds[i]]
            seen = {}
            while stack:
                j, d = stack.pop()
                if d >= 20: continue
                if j in seen and seen[j] <= d: continue
                seen[j] = d
                p = ins[j]
                if p.cls != 'none':
                    n = need(p, c)
                    if n - d > worst: worst = n - d
                for q in preds[j]:
                    stack.append((q, d + p.states()))
            if worst > 0:
                if verbose: print('nop %d before: %s' % (worst, c.text.strip()))
                new = []
                k = worst
                while k > 0:
                    m = min(k, 16); new.append(Ins('    s_nop %d' % (m - 1))); k -= m
                ins[i:i] = new
                total += worst
                changed = True
                break
    return [x.text for x in ins]


def addresses(body, extra_labels=()):
    import subprocess, tempfile
    d = tempfile.mkdtemp()
    src = ['.amdgcn_target "amdgcn-amd-amdhsa--gfx950"', '.text']
    for k, l in enumerate(body): src += ['ZZ%d:' % k, l]
    src += ['%s:' % x for x in extra_labels] + ['s_endpgm', '']
    open(d + '/a.s', 'w').write('\n'.join(src))
    subprocess.check_call(['clang', '-x', 'assembler', '-target', 'amdgcn-amd-amdhsa', '-mcpu=gfx950', '-c', d + '/a.s', '-o', d + '/a.o'])
    out = subprocess.check_output(['llvm-objdump', '-t', d + '/a.o']).decode()
    ad = {int(m.group(2)): int(m.group(1), 16) for m in re.finditer(r'([0-9a-f]{16}) .* ZZ(\d+)$', out, re.M)}
    return [ad[k] for k in range(len(body))]

def place_pads(body, specs):
    body = list(body)
    todo = [s[0] for s in specs]
    for name, ret, ref, dist in specs:
        ad = addresses(body, todo)
        base = 0 if ref is None else ad[body.index(ref + ':')] & ~63
        tgt = base + dist
        ok = []; z = False
        for l in body:
            ok.append(not z)
            c = l.split(';')[0].strip()
            if c == 's_mov_b64 exec, 0' or c[:-1] in [s_[1] for s_ in specs]: z = True
            elif c == 's_mov_b64 exec, -1' or c == 'L_G0:': z = False
        idx = [i for i, l in enumerate(body) if ad[i] >= tgt and Ins(l).cls != 'none' and ok[i]]
        todo.remove(name)
        if not idx:
            body += [name + ':', '    s_branch %s' % ret]; continue
        i = idx[0]
        assert ad[i] < tgt + 64
        body[i:i] = [name + ':', '    s_cbranch_execz %s' % ret]
    return body
```

```python
def emit(e, lab, diag, names, gnames, ST0, WS_T, sWs):
    sA, sB, sCnt = 's35', 's36', 's37'
    dn, dw, dstat = diag.split('.')
    k = names.index(gnames.get(dn, dn)); ws_ = [4] if dw == 'G' else [0, 1, 2, 3]
    e('s_cmp_eq_u32 s2, 224'); e('s_cbranch_scc0 L_end')
    e('s_cmp_eq_u32 s3, 0'); e('s_cbranch_scc0 L_end')
    e('s_mov_b64 exec, -1')
    e('s_mov_b32 %s, 100000' % sCnt)
    lab('L_d0')
    e('s_memrealtime s[52:53]'); e('s_waitcnt lgkmcnt(0)')
    e('s_sub_u32 s52, s52, s%d' % ST0)
    e('s_sub_u32 %s, %s, 1' % (sCnt, sCnt)); e('s_cbranch_scc1 L_end')
    e('s_cmp_lt_u32 s52, 4000'); e('s_cbranch_scc1 L_d0')
    e('v_and_b32 v6, 63, v0'); e('v_mul_u32_u24 v6, 320, v6'); e('v_add_u32 v6, %d, v6' % WS_T)
    e('v_mov_b32 v8, -1'); e('v_mov_b32 v9, 0'); e('v_mov_b32 v12, 0')
    for j in range(4):
        for w_ in range(5):
            e('global_load_dword v10, v6, %s offset:%d sc1' % (sWs, 64 * w_))
            e('global_load_dword v11, v6, %s offset:%d sc1' % (sWs, 64 * w_ + 4 * k))
            e('s_waitcnt vmcnt(0)')
            e('v_min_u32 v8, v8, v10')
            if w_ in ws_:
                e('v_max_u32 v9, v9, v11'); e('v_subrev_u32 v11, s%d, v11' % ST0); e('v_add_u32 v12, v12, v11')
        e('v_add_u32 v6, %d, v6' % (320 * 64))
    e('s_mov_b32 %s, -1' % sA); e('s_mov_b32 %s, 0' % sB); e('s_mov_b32 s54, 0')
    for l in range(64):
        e('v_readlane_b32 s52, v8, %d' % l); e('v_readlane_b32 s53, v9, %d' % l); e('v_readlane_b32 s55, v12, %d' % l)
        e('s_min_u32 %s, %s, s52' % (sA, sA)); e('s_max_u32 %s, %s, s53' % (sB, sB)); e('s_add_u32 s54, s54, s55')
    if dstat == 'max':
        e('s_sub_u32 %s, %s, %s' % (sB, sB, sA)); e('s_min_u32 %s, %s, 5000' % (sB, sB)); e('s_mul_i32 %s, %s, 100' % (sB, sB))
    elif dstat == 'avg':
        e('s_mul_i32 s54, s54, 100'); e('s_ashr_i32 s54, s54, %d' % (8 if dw == 'G' else 10))
        e('s_sub_u32 s55, s%d, %s' % (ST0, sA)); e('s_mul_i32 s55, s55, 100'); e('s_add_u32 %s, s54, s55' % sB); e('s_min_u32 %s, %s, 500000' % (sB, sB))
    else: e('s_mov_b32 %s, 0' % sB)
    e('s_add_u32 %s, %s, 10000' % (sB, sB))
    e('s_mov_b32 %s, 2000000' % sCnt)
    lab('L_ds')
    e('s_memrealtime s[52:53]'); e('s_waitcnt lgkmcnt(0)')
    e('s_sub_u32 s52, s52, %s' % sA)
    e('s_sub_u32 %s, %s, 1' % (sCnt, sCnt)); e('s_cbranch_scc1 L_end')
    e('s_cmp_lt_u32 s52, %s' % sB); e('s_cbranch_scc1 L_ds')
```

```python
import sys, math, struct
sys.path.insert(0, 'work')
from asmlib import fix_hazards, place_pads

NAME = 'parallel_sum__sliding_block_cached__dense_activation_gelu__decode'
def f2u(x): return struct.unpack('<I', struct.pack('<f', x))[0]
def hx(x): return '0x%08x' % (x & 0xffffffff)
def v(i): return 'v%d' % i
def vr(i, n): return 'v[%d:%d]' % (i, i + n - 1)
FULL = 'row_mask:0xf bank_mask:0xf'
NEG = 'op_sel_hi:[1,0] neg_lo:[0,1] neg_hi:[0,1]'

def gen(stamps=False, spin_cap=200000, force_slow=False, diag=None, P=4, bar0='ln', kE=3, kO=6, hops=True, copies=True,
        outflag='', pgate=3, hidx=3, fretry=8, rdepth=1, preb1=True):
    L = []
    def e(s): L.append('    ' + s)
    def lab(s): L.append(s + ':')
    def cm(s): L.append('    ; ' + s)
    NT = ' nt'
    WS_E = 0; WS_H = 0x1000; WS_QF = 0x10000; QS_X = 0x20000; WS_P = 0x40000; WS_R = 0x80000; WS_O = 0x100000
    OS_SLOW = 0x200000; WS_T = 0x200000
    XN = 0; QB = 1024; FL = 2048; ML = 2112; QG = 2560; OL = 4096; LDS = OL + 8192
    sX, sK, sV, sWq, sWo, sW1, sB1 = 's[4:5]', 's[6:7]', 's[8:9]', 's[10:11]', 's[12:13]', 's[16:17]', 's[18:19]'
    sW2, sB2, sOut, sWs = 's[20:21]', 's[22:23]', 's[24:25]', 's[28:29]'
    sH, sC, sKV, sT, sW, sA, sB, sCnt, sHi, sCexp, sStep, sLC, sTq, sNU = ['s%d' % i for i in range(30, 44)]
    sTb = ['s44', 's45', 's46', 's47']
    sP = ['s[48:49]', 's[50:51]', 's[52:53]']; sPn = [48, 50, 52]
    sEx = 's[54:55]'; sPK = 's[58:59]'; sM1 = 's[56:57]'; sM2 = 's[60:61]'; sD = 's62'; sSel = 's63'
    ST0 = 64
    names = ['start', 'karg', 'Kiss', 'Viss', 'qarr', 'smax', 'Varr', 'opub', 'ogath', 'ppub', 'wgot', 'pgot', 'rpub', 'end']
    gnames = {'x': 'Kiss', 'wq': 'Viss', 'qpub': 'qarr', 'w1': 'smax', 'rgot': 'rpub', 'qfail': 'karg'}
    def stamp(n, wait=False):
        if stamps:
            k = names.index(gnames.get(n, n)); e('s_memrealtime s[%d:%d]' % (ST0 + 2 * k, ST0 + 2 * k + 1))
            if wait: e('s_waitcnt lgkmcnt(0)')
    def done(): e('s_branch L_fin') if stamps else e('s_endpgm')
    def tagcalc():
        cm('launch tag T = epoch + const; byte k of T tags word k of a 16-byte granule; the q granules also carry the die id')
        e('s_add_u32 %s, %s, 0x5b3d27c5' % (sT, sT))
        for k in range(4): e('s_bfe_u32 %s, %s, 0x%x' % (sTb[k], sT, 0x80000 | (8 * k)))
        e('s_getreg_b32 %s, hwreg(HW_REG_XCC_ID, 0, 4)' % sA)
        if force_slow: e('s_and_b32 %s, s2, 8' % sA)
        e('s_and_b32 %s, %s, 0xf0' % (sTq, sT))
        e('s_or_b32 %s, %s, %s' % (sTq, sTq, sA))
    def masks(vM, t0, t1):
        cm('vM[r]: 16-bit mask of element (lane&7) inside an 8-element MFMA operand')
        e('v_and_b32 %s, 1, v0' % v(t0))
        e('v_lshlrev_b32 %s, 4, %s' % (v(t0), v(t0)))
        e('v_mov_b32 %s, 0xffff' % v(t1))
        e('v_lshlrev_b32 %s, %s, %s' % (v(t1), v(t0), v(t1)))
        e('v_bfe_u32 %s, v0, 1, 2' % v(t0))
        e('v_cmp_eq_u32 vcc, 0, %s' % v(t0)); e('v_cmp_eq_u32 %s, 1, %s' % (sM1, v(t0))); e('v_cmp_eq_u32 %s, 2, %s' % (sM2, v(t0)))
        e('v_cndmask_b32 %s, 0, %s, vcc' % (v(vM), v(t1)))
        e('v_cmp_eq_u32 vcc, 3, %s' % v(t0))
        e('v_cndmask_b32 %s, 0, %s, %s' % (v(vM + 1), v(t1), sM1)); e('v_cndmask_b32 %s, 0, %s, %s' % (v(vM + 2), v(t1), sM2))
        e('v_cndmask_b32 %s, 0, %s, vcc' % (v(vM + 3), v(t1)))
    def fixup_tag(D, J, tags, vFF):
        cm('add the two row-parity halves (lane l + lane l+40), tag; result in lanes 0-7 and 16-23')
        for r in range(4): e('v_permlane32_swap_b32 %s, %s' % (v(D + r), v(J + r)))
        for r in range(4): e('v_add_f32_dpp %s, %s, %s row_ror:8 %s' % (v(D + r), v(J + r), v(D + r), FULL))
        e('s_mov_b64 exec, 0x00ff00ff')
        for r in range(4): e('v_bfi_b32 %s, %s, %s, %s' % (v(D + r), v(vFF), tags[r], v(D + r)))
    def mfma(D, A, B, first): e('v_mfma_f32_16x16x32_bf16 %s, %s, %s, %s' % (vr(D, 4), vr(A, 4), vr(B, 4), '0' if first else vr(D, 4)))

    gXs = 4; gWq = 8; gA = 64; gSel = 88; gM = 96; gP = 100; gD = 108; gt = list(range(116, 136)); gW1 = 136
    a_wq, a_xs, a_w1, gFF, a_pub, a_h, g16, r_w1, l_xw, l_xr, junk = gt[0:11]
    ts, tm, tv = gt[12], gt[14], gt[16]
    e('s_load_dwordx16 s[4:19], s[0:1], 0')
    e('s_load_dwordx8 s[20:27], s[0:1], 64')
    e('s_load_dwordx2 s[28:29], s[0:1], 96')
    stamp('start')
    e('v_readfirstlane_b32 %s, v0' % sW)
    e('s_cmpk_ge_u32 s2, 0x100')
    e('s_cbranch_scc1 L_end')
    e('s_and_b32 %s, s2, 7' % sH)
    e('s_lshr_b32 %s, s2, 3' % sC)
    e('s_lshr_b32 %s, %s, 6' % (sW, sW))
    e('s_cbranch_scc0 L_G0')
    if hops:
        cm('the four waves that have nothing to do yet each start one instruction-fetch window (no memory op runs with EXEC=0)')
        e('s_mov_b64 exec, 0')
        e('s_mov_b32 %s, 0' % sSel)
        e('s_cmp_eq_u32 %s, 1' % sW); e('s_cbranch_scc1 L_pad0')
        e('s_cmp_eq_u32 %s, 2' % sW); e('s_cbranch_scc1 L_pad2')
        e('s_bitcmp1_b32 s2, 3'); e('s_cbranch_scc1 L_odd')
        e('s_bitcmp1_b32 %s, 0' % sW); e('s_cbranch_scc1 L_pad1')
        e('s_bitcmp1_b32 s2, 4'); e('s_cbranch_scc1 L_pad3'); e('s_branch L_pad5')
        lab('L_odd')
        e('s_bitcmp1_b32 %s, 0' % sW); e('s_cbranch_scc1 L_pad4'); e('s_branch L_pad6')
    else: e('s_branch L_A')
    lab('L_G0')
    cm('G wave: wq slice = 64 columns (h*8 + (c&7)) x 112 rows ((c>>3)*112 + (l>>3)*14 + t)')
    e('s_lshr_b32 %s, s2, 6' % sA)
    e('s_mul_i32 %s, %s, %d' % (sA, sA, 112 * 8192))
    e('s_and_b32 %s, %s, 7' % (sB, sC))
    e('s_lshl3_add_u32 %s, %s, %s' % (sB, sH, sB))
    e('s_lshl_b32 %s, %s, 7' % (sB, sB))
    e('s_add_u32 %s, %s, %s' % (sA, sA, sB))
    e('v_lshrrev_b32 v2, 3, v0')
    e('v_and_b32 v3, 7, v0')
    e('v_mul_u32_u24 %s, %d, v2' % (v(a_wq), 14 * 8192))
    e('v_lshl_add_u32 %s, v3, 4, %s' % (v(a_wq), v(a_wq)))
    e('v_add_u32 %s, %s, %s' % (v(a_wq), sA, v(a_wq)))
    e('v_min_u32 %s, 55, v0' % v(a_xs))
    e('v_lshlrev_b32 %s, 4, %s' % (v(a_xs), v(a_xs)))
    e('s_movk_i32 %s, 0x2000' % sStep)
    e('s_waitcnt lgkmcnt(0)')
    stamp('karg')
    e('global_load_dwordx4 %s, %s, %s' % (vr(gXs, 4), v(a_xs), sX))
    for t in range(14):
        e('global_load_dwordx4 %s, %s, %s%s' % (vr(gWq + 4 * t, 4), v(a_wq), sWq, NT))
        if t < 13: e('v_add_u32 %s, %s, %s' % (v(a_wq), sStep, v(a_wq)))
    e('s_load_dword %s, %s, %d' % (sT, sWs, WS_E))
    e('s_setprio 3')
    cm('q publish address: h*8192 + c*256 + ((l>>4)*8 + (l&7))*16 ; read it once so the lines are valid in L2')
    e('s_lshl_b32 %s, %s, 13' % (sA, sH)); e('s_lshl_b32 %s, %s, 8' % (sB, sC)); e('s_add_u32 %s, %s, %s' % (sA, sA, sB))
    e('s_add_u32 %s, %s, %d' % (sA, sA, WS_QF))
    e('v_lshl_add_u32 %s, v3, 4, %s' % (v(a_pub), sA))
    e('v_and_b32 %s, 16, v0' % v(g16))
    e('v_lshl_add_u32 %s, %s, 3, %s' % (v(a_pub), v(g16), v(a_pub)))
    e('global_load_dword %s, %s, %s nt' % (v(junk), v(a_pub), sWs))
    cm('w1 slice (even c, li = (c>>1)*8 + h < 112): 64 columns (li%28) x 112 rows ((li/28)*112 + (l>>3)*14 + t)')
    e('s_lshl2_add_u32 %s, %s, %s' % (sD, sC, sH))
    e('s_bitcmp1_b32 %s, 0' % sC)
    e('s_cselect_b32 %s, 127, %s' % (sD, sD))
    e('s_cmpk_lt_u32 %s, 112' % sD)
    e('s_cselect_b32 %s, 1, 0' % sNU)
    e('s_cbranch_scc0 L_Gno1')
    e('s_mul_i32 %s, %s, 2341' % (sLC, sD)); e('s_lshr_b32 %s, %s, 16' % (sLC, sLC))
    e('s_mul_i32 %s, %s, 28' % (sA, sLC)); e('s_sub_u32 %s, %s, %s' % (sD, sD, sA))
    e('s_mul_i32 %s, %s, 224' % (sB, sLC))
    e('v_mad_u32_u24 %s, v2, 28, %s' % (v(r_w1), sB))
    e('s_lshl_b32 %s, %s, 7' % (sA, sD))
    e('v_lshl_add_u32 %s, v3, 4, %s' % (v(a_w1), sA))
    e('s_movk_i32 %s, 1792' % sA)
    e('v_mad_u32_u24 %s, %s, %s, %s' % (v(a_w1), v(r_w1), sA, v(a_w1)))
    e('s_movk_i32 %s, 7168' % sStep)
    for t in range(14):
        e('global_load_dwordx4 %s, %s, %s offset:%d%s' % (vr(gW1 + 4 * t, 4), v(a_w1), sW1, 3584 * (t & 1), NT))
        if (t & 1) and t < 13: e('v_add_u32 %s, %s, %s' % (v(a_w1), sStep, v(a_w1)))
    lab('L_Gj1')
    if stamps:
        e('s_mov_b32 s3, 4')
        for k in range(2, len(names)): e('s_mov_b32 s%d, 0' % (ST0 + 2 * k))
    masks(gM, ts, tm)
    e('s_mov_b32 %s, 0xffff0000' % sHi)
    e('v_mov_b32 %s, 0x0c0c0c0c' % v(ts))
    e('s_mov_b32 %s, 0x01000100' % sA); e('s_mov_b32 %s, 0x03020302' % sB)
    for r in range(4):
        e('v_bfi_b32 %s, %s, %s, %s' % (v(gSel + r), v(gM + r), sA, v(ts)))
        e('v_bfi_b32 %s, %s, %s, %s' % (v(gSel + 4 + r), v(gM + r), sB, v(ts)))
    e('v_cmp_gt_u32 %s, 56, v0' % sEx)
    e('v_mov_b32 %s, 0xff' % v(gFF))
    e('v_lshlrev_b32 %s, 4, v0' % v(l_xw))
    e('s_lshr_b32 %s, s2, 6' % sA); e('s_mul_i32 %s, %s, 224' % (sA, sA))
    e('v_mad_u32_u24 %s, v2, 28, %s' % (v(l_xr), sA))
    e('v_mov_b32 %s, %s' % (v(tv), hx(f2u(1.0 / 448))))
    e('s_waitcnt vmcnt(29)')
    if bar0 == 'x': e('s_barrier')
    stamp('x')
    cm('layernorm (two pass), with the bf16 roundings of the reference')
    xs = gA; xd = gA + 8
    for i in range(4):
        e('v_lshlrev_b32 %s, 16, %s' % (v(xs + 2 * i), v(gXs + i)))
        e('v_and_b32 %s, %s, %s' % (v(xs + 2 * i + 1), sHi, v(gXs + i)))
    def red(r, dst):
        R = ['v_add_f32_dpp %s, %s, %s %s %s bound_ctrl:0' % (v(r), v(r), v(r), m, FULL) for m in ['row_shr:1', 'row_shr:2', 'row_shr:4', 'row_shr:8']]
        return R + ['v_add_f32_dpp %s, %s, %s row_bcast:15 row_mask:0xa bank_mask:0xf' % (v(r), v(r), v(r)),
                    'v_add_f32_dpp %s, %s, %s row_bcast:31 row_mask:0xc bank_mask:0xf' % (v(r), v(r), v(r)),
                    'v_readlane_b32 %s, %s, 63' % (dst, v(r))]
    e('v_pk_add_f32 %s, %s, %s' % (vr(xd, 2), vr(xs, 2), vr(xs + 2, 2)))
    e('v_pk_add_f32 %s, %s, %s' % (vr(xd + 2, 2), vr(xs + 4, 2), vr(xs + 6, 2)))
    e('v_pk_add_f32 %s, %s, %s' % (vr(xd, 2), vr(xd, 2), vr(xd + 2, 2)))
    e('v_add_f32 %s, %s, %s' % (v(ts), v(xd), v(xd + 1)))
    e('v_cndmask_b32 %s, 0, %s, %s' % (v(ts), v(ts), sEx))
    for x_ in red(ts, sA): e(x_)
    e('v_mul_f32 %s, %s, %s' % (v(tm), sA, v(tv)))
    for i in range(4): e('v_pk_add_f32 %s, %s, %s %s' % (vr(xd + 2 * i, 2), vr(xs + 2 * i, 2), vr(tm, 2), NEG))
    e('v_pk_mul_f32 %s, %s, %s' % (vr(ts, 2), vr(xd, 2), vr(xd, 2)))
    for i in range(1, 4): e('v_pk_fma_f32 %s, %s, %s, %s' % (vr(ts, 2), vr(xd + 2 * i, 2), vr(xd + 2 * i, 2), vr(ts, 2)))
    e('v_add_f32 %s, %s, %s' % (v(ts), v(ts), v(ts + 1)))
    e('v_cndmask_b32 %s, 0, %s, %s' % (v(ts), v(ts), sEx))
    e('v_cvt_pk_bf16_f32 %s, %s, %s' % (v(tm), v(tm), v(tm)))
    e('v_and_b32 %s, %s, %s' % (v(tm), sHi, v(tm)))
    dops = []
    for i in range(4): dops.append('v_pk_add_f32 %s, %s, %s %s' % (vr(xd + 2 * i, 2), vr(xs + 2 * i, 2), vr(tm, 2), NEG))
    for i in range(4): dops.append('v_cvt_pk_bf16_f32 %s, %s, %s' % (v(xs + i), v(xd + 2 * i), v(xd + 2 * i + 1)))
    for i in range(4):
        dops.append('v_lshlrev_b32 %s, 16, %s' % (v(xd + 2 * i), v(xs + i)))
        dops.append('v_and_b32 %s, %s, %s' % (v(xd + 2 * i + 1), sHi, v(xs + i)))
    for r_ in red(ts, sA):
        e(r_); e(dops.pop(0)); e(dops.pop(0))
    if bar0 == 'var': e('s_barrier')
    e('v_mul_f32 %s, %s, %s' % (v(tv), sA, v(tv)))
    e('v_cvt_pk_bf16_f32 %s, %s, %s' % (v(tv), v(tv), v(tv)))
    e('v_and_b32 %s, %s, %s' % (v(tv), sHi, v(tv)))
    e('v_add_f32 %s, %s, %s' % (v(tv), hx(f2u(1e-5)), v(tv)))
    e('v_cvt_pk_bf16_f32 %s, %s, %s' % (v(tv), v(tv), v(tv)))
    e('v_and_b32 %s, %s, %s' % (v(tv), sHi, v(tv)))
    e('v_sqrt_f32 %s, %s' % (v(tv), v(tv)))
    e(dops.pop(0))
    e('v_cvt_pk_bf16_f32 %s, %s, %s' % (v(tv), v(tv), v(tv)))
    e('v_and_b32 %s, %s, %s' % (v(tv), sHi, v(tv)))
    e('v_rcp_f32 %s, %s' % (v(tv), v(tv)))
    e(dops.pop(0))
    for i in range(4): e('v_pk_mul_f32 %s, %s, %s op_sel_hi:[1,0]' % (vr(xd + 2 * i, 2), vr(xd + 2 * i, 2), vr(tv, 2)))
    for i in range(4): e('v_cvt_pk_bf16_f32 %s, %s, %s' % (v(xs + i), v(xd + 2 * i), v(xd + 2 * i + 1)))
    e('ds_write_b128 %s, %s offset:%d' % (v(l_xw), vr(xs, 4), XN))
    def xnread(a):
        for k in range(3): e('ds_read2_b32 %s, %s offset0:%d offset1:%d' % (vr(gP + 2 * k, 2), v(a), XN // 4 + 2 * k, XN // 4 + 2 * k + 1))
        e('ds_read_b32 %s, %s offset:%d' % (v(gP + 6), v(a), XN + 24))
    xnread(l_xr)
    e('s_waitcnt lgkmcnt(0)')
    if bar0 == 'ln': e('s_barrier')
    def gemv(D, W, young, extra=None):
        cm('vector x matrix: A operand = xn[row] placed on the diagonal, B operand = 8 rows x 64 columns')
        ga = lambda t: gA + 4 * (t % 6)
        def gm(t):
            e('s_waitcnt vmcnt(%d)' % (13 - t + young))
            if extra is not None and bar0 == t: e('s_barrier')
            mfma(D, ga(t), W + 4 * t, t == 0)
        for k in range(7):
            for r in range(4): e('v_perm_b32 %s, %s, %s, %s' % (v(ga(2 * k) + r), v(gP + k), v(gP + k), v(gSel + r)))
            for r in range(4): e('v_perm_b32 %s, %s, %s, %s' % (v(ga(2 * k + 1) + r), v(gP + k), v(gP + k), v(gSel + 4 + r)))
            if k >= 1: gm(2 * k - 2); gm(2 * k - 1)
            if k == 0 and extra: extra()
        gm(12); gm(13)
    gemv(gD, gWq, 15, tagcalc)
    stamp('wq')
    fixup_tag(gD, gD + 4, [sTq] + sTb[1:], gFF)
    e('global_store_dwordx4 %s, %s, %s' % (v(a_pub), vr(gD, 4), sWs))
    e('ds_write_b128 %s, %s offset:%d' % (v(l_xw), vr(gD, 4), QG))
    e('s_mov_b64 exec, -1')
    e('s_waitcnt lgkmcnt(0)')
    stamp('qpub')
    e('s_barrier')
    e('s_setprio 0')
    e('v_mov_b32 %s, 0' % v(a_h))
    e('s_cmp_eq_u32 %s, 1' % sNU)
    e('s_cbranch_scc0 L_Gtail')
    gE = gWq
    xnread(r_w1)
    e('s_mul_i32 %s, %s, 7168' % (sB, sLC)); e('s_lshl_b32 %s, %s, 8' % (sA, sD)); e('s_add_u32 %s, %s, %s' % (sA, sA, sB)); e('s_add_u32 %s, %s, %d' % (sA, sA, WS_H))
    e('v_lshl_add_u32 %s, v3, 5, %s' % (v(a_h), sA))
    e('v_add_u32 %s, %s, %s' % (v(a_h), v(g16), v(a_h)))
    e('s_waitcnt lgkmcnt(0)')
    gemv(gE, gW1, 1)
    fixup_tag(gE, gE + 4, sTb, gFF)
    e('s_mov_b64 exec, -1')
    stamp('w1')
    e('s_branch L_Gtail')
    lab('L_Gno1')
    e('v_mov_b32 %s, 0' % v(r_w1))
    e('s_mov_b32 %s, 13' % sA)
    lab('L_Gno2')
    e('global_load_dword %s, %s, %s' % (v(gW1), v(r_w1), sX))
    e('s_sub_u32 %s, %s, 1' % (sA, sA))
    e('s_cbranch_scc0 L_Gno2')
    e('s_branch L_Gj1')
    gt0 = len(L)
    lab('L_Gtail')
    ga = [a_wq, a_xs, a_w1, a_pub, l_xw, l_xr]; gd = gXs
    e('s_lshr_b32 %s, %s, 1' % (sLC, sC))
    e('s_bitcmp1_b32 %s, 0' % sC)
    e('s_cbranch_scc0 L_GE')
    cm('odd WG: read the gather lines of slots c-1, c once so that they are valid in L2')
    e('s_lshl_b32 %s, %s, 17' % (sA, sH)); e('s_lshl_b32 %s, %s, 13' % (sB, sLC)); e('s_add_u32 %s, %s, %s' % (sA, sA, sB)); e('s_add_u32 %s, %s, %d' % (sA, sA, WS_O))
    e('v_lshl_add_u32 %s, v0, 7, %s' % (v(ga[0]), sA))
    if P < 8: e('s_barrier')
    e('s_barrier')
    e('global_load_dword %s, %s, %s nt' % (v(gd), v(ga[0]), sWs))
    lab('L_Gx')
    e('s_barrier'); e('s_barrier'); e('s_barrier')
    done()
    lab('L_GE')
    cm('even WG: publish h, then reduce four output columns')
    e('s_lshl_b32 %s, %s, 15' % (sA, sH)); e('s_lshl_b32 %s, %s, 11' % (sB, sLC)); e('s_add_u32 %s, %s, %s' % (sA, sA, sB)); e('s_add_u32 %s, %s, %d' % (sA, sA, WS_R))
    e('v_lshl_add_u32 %s, v0, 4, %s' % (v(ga[0]), sA))
    e('v_and_b32 %s, 31, v0' % v(ga[1])); e('v_lshl_add_u32 %s, %s, 4, %s' % (v(ga[1]), v(ga[1]), sA))
    e('v_mad_u32_u24 %s, v0, 24, %s' % (v(ga[4]), sA))
    e('s_min_u32 %s, %s, 6' % (sD, sH)); e('s_lshl_b32 %s, %s, 7' % (sD, sD))
    e('s_lshl3_add_u32 %s, %s, %s' % (sA, sLC, sD))
    e('v_lshrrev_b32 %s, 4, v0' % v(ga[2]))
    e('v_lshl_add_u32 %s, %s, 1, %s' % (v(ga[2]), v(ga[2]), sA))
    e('v_mov_b32 %s, 0' % v(ga[3]))
    e('s_lshr_b32 %s, %s, 2' % (sA, sC)); e('s_mul_i32 %s, %s, 448' % (sA, sA))
    e('v_min_u32 %s, 55, v0' % v(ga[5])); e('v_lshl_add_u32 %s, %s, 3, %s' % (v(ga[5]), v(ga[5]), sA))
    e('s_mov_b32 %s, %d' % (sCnt, spin_cap))
    if P < 8: e('s_barrier')
    e('s_barrier')
    e('s_cmp_eq_u32 %s, 1' % sNU); e('s_cbranch_scc0 L_hs')
    e('s_mov_b64 exec, 0x00ff00ff')
    e('global_store_dwordx4 %s, %s, %s sc1' % (v(a_h), vr(gE, 4), sWs))
    e('s_mov_b64 exec, -1')
    lab('L_hs')
    e('s_cmp_eq_u32 %s, 7' % sH)
    e('s_cbranch_scc1 L_Gx')
    e('global_load_dword %s, %s, %s nt' % (v(gd), v(ga[4]), sWs))
    e('global_load_ushort %s, %s, %s nt' % (v(gd + 1), v(ga[2]), sB2))
    e('global_load_ushort %s, %s, %s' % (v(gd + 2), v(ga[2]), sX))
    if preb1:
        e('s_bitcmp1_b32 %s, 1' % sC); e('s_cbranch_scc0 L_nb1')
        e('global_load_dword %s, %s, %s' % (v(gd), v(ga[5]), sB1))
        lab('L_nb1')
    e('s_barrier')
    e('ds_read_b128 %s, %s offset:%d' % (vr(gD, 4), v(ga[3]), FL))
    e('s_barrier')
    e('s_waitcnt lgkmcnt(0)')
    e('v_or3_b32 %s, %s, %s, %s' % (v(gD), v(gD), v(gD + 1), v(gD + 2)))
    e('v_or_b32 %s, %s, %s' % (v(gD), v(gD), v(gD + 3)))
    e('v_add_u32 %s, %s, %s' % (v(ga[0]), v(gD), v(ga[0])))
    e('v_add_u32 %s, %s, %s' % (v(ga[1]), v(gD), v(ga[1])))
    e('s_barrier')
    e('s_waitcnt vmcnt(0)')
    e('v_lshlrev_b32 %s, 16, %s' % (v(gd + 1), v(gd + 1)))
    e('v_lshlrev_b32 %s, 16, %s' % (v(gd + 2), v(gd + 2)))
    e('v_add_f32 %s, %s, %s' % (v(gd + 1), v(gd + 1), v(gd + 2)))
    e('s_barrier')
    rg_ = gD; tq = ts; RS = [gA + 8 * d for d in range(3)]
    def rsweep(d):
        e('global_load_dwordx4 %s, %s, %s offset:1024 sc1' % (vr(RS[d] + 4, 4), v(ga[1]), sWs))
        e('global_load_dwordx4 %s, %s, %s sc1' % (vr(RS[d], 4), v(ga[0]), sWs))
    for d in range(rdepth - 1): rsweep(d)
    lab('L_rchk')
    for d in range(rdepth):
        rsweep((d + rdepth - 1) % rdepth)
        e('s_waitcnt vmcnt(%d)' % (2 * rdepth - 1))
        for k in range(4, 8): e('v_xor_b32 %s, %s, %s' % (v(rg_ + k), sTb[k & 3], v(RS[d] + k)))
        e('v_or3_b32 %s, %s, %s, %s' % (v(tq), v(rg_ + 4), v(rg_ + 5), v(rg_ + 6)))
        e('s_waitcnt vmcnt(%d)' % (2 * rdepth - 2))
        for k in range(4): e('v_xor_b32 %s, %s, %s' % (v(rg_ + k), sTb[k & 3], v(RS[d] + k)))
        e('v_or3_b32 %s, %s, %s, %s' % (v(tq), v(tq), v(rg_ + 7), v(rg_)))
        e('v_or3_b32 %s, %s, %s, %s' % (v(tq), v(tq), v(rg_ + 1), v(rg_ + 2)))
        e('v_bitop3_b32 %s, %s, %s, %s bitop3:0xa8' % (v(tq), v(tq), v(rg_ + 3), v(gFF)))
        e('v_cmp_ne_u32 vcc, 0, %s' % v(tq))
        e('s_cbranch_vccz L_rok')
    e('s_sub_u32 %s, %s, 1' % (sCnt, sCnt))
    e('s_cbranch_scc0 L_rchk')
    lab('L_rok')
    stamp('rgot')
    cm('lanes 0-31 and 32-63 hold the same 32 FFN partials: each counts one half')
    e('v_pk_fma_f32 %s, %s, 0.5, %s op_sel_hi:[1,0,1]' % (vr(rg_, 2), vr(rg_ + 4, 2), vr(rg_, 2)))
    e('v_pk_fma_f32 %s, %s, 0.5, %s op_sel_hi:[1,0,1]' % (vr(rg_ + 2, 2), vr(rg_ + 6, 2), vr(rg_ + 2, 2)))
    e('v_permlane32_swap_b32 %s, %s' % (v(rg_), v(rg_ + 2)))
    e('v_permlane32_swap_b32 %s, %s' % (v(rg_ + 1), v(rg_ + 3)))
    e('v_pk_add_f32 %s, %s, %s' % (vr(rg_, 2), vr(rg_, 2), vr(rg_ + 2, 2)))
    e('v_permlane16_swap_b32 %s, %s' % (v(rg_), v(rg_ + 1)))
    e('v_add_f32 %s, %s, %s' % (v(rg_), v(rg_), v(rg_ + 1)))
    for m in (1, 2, 4, 8): e('v_add_f32_dpp %s, %s, %s row_ror:%d %s' % (v(rg_), v(rg_), v(rg_), m, FULL))
    e('s_mov_b32 exec_lo, 0x00010001'); e('s_mov_b32 exec_hi, 0x00010001')
    e('v_add_f32 %s, %s, %s' % (v(rg_), v(rg_), v(gd + 1)))
    e('v_cvt_pk_bf16_f32 %s, %s, %s' % (v(rg_), v(rg_), v(rg_)))
    e('global_store_short %s, %s, %s %s' % (v(ga[2]), v(rg_), sOut, outflag))
    e('s_cmp_eq_u32 s2, 0'); e('s_cbranch_scc0 L_fin')
    cm('every WG has read the epoch long ago: advance it')
    e('s_mov_b64 exec, 1')
    e('v_mov_b32 %s, %s' % (v(tq), sT))
    e('global_store_dword %s, %s, %s %s' % (v(ga[3]), v(tq), sWs, outflag))
    done()
    GT = L[gt0:]; del L[gt0:]

    vM = 4; vFF = 8; vB1 = 9
    aK = 10; aV = 14; aQ, aO, aX0, aX1, aX2, aR = 16, 17, 18, 19, 20, 21
    l_qw, l_ml, l_or, l_mr = 22, 23, 24, 25
    l_ow = 26; vZ = 28; t_s, tc, td = 29, 30, 31
    l_qr = 32; vSel = 36; vFl = 40; vAcc = 44
    vKk = 52; vVv = 84; vG = 116; vD = 132; vQB = 140; vA = 156
    vWo = vVv
    NV = 192
    if hops:
        lab('L_hub')
        e('s_cmp_eq_u32 %s, 1' % sSel); e('s_cbranch_scc1 L_A')
        cm('second round: the other windows are in the L2 of this die by now')
        e('s_mov_b32 %s, 1' % sSel)
        e('s_cmp_eq_u32 %s, 1' % sW); e('s_cbranch_scc1 L_pad3')
        e('s_cmp_eq_u32 %s, 3' % sW); e('s_cbranch_scc1 L_pad5')
        e('s_cmp_eq_u32 %s, 4' % sW); e('s_cbranch_scc1 L_pad6')
        e('s_bitcmp1_b32 s2, 3'); e('s_cbranch_scc0 L_pad4'); e('s_branch L_pad1')
    lab('L_A')
    e('s_mov_b64 exec, -1')
    e('s_sub_u32 %s, %s, 1' % (sW, sW))
    e('v_subrev_u32 v0, 64, v0')
    if stamps:
        e('s_mov_b32 s3, %s' % sW)
        for k in range(1, len(names)): e('s_mov_b32 s%d, 0' % (ST0 + 2 * k))
    e('s_waitcnt lgkmcnt(0)')
    e('s_load_dword %s, %s, %d' % (sT, sWs, WS_E))
    cm("K address: base + (16*rr + 4w + g)*512 + eta*64 + s*16 + ((t^x)<<7); i=l&15: g=i>>2, rr=(i>>1)&1, eta=i&1; s=l>>4, x=c&3")
    e('s_lshl_b32 %s, %s, 22' % (sKV, sH))
    e('s_lshl_b32 %s, %s, 15' % (sA, sC))
    e('s_add_u32 %s, %s, %s' % (sKV, sKV, sA))
    e('s_lshl_b32 %s, %s, 11' % (sA, sW))
    e('s_add_u32 %s, %s, %s' % (sKV, sKV, sA))
    e('s_add_u32 %s, %s, 0x300000' % (sKV, sKV))
    e('s_and_b32 %s, %s, 3' % (sB, sC))
    e('s_lshl_b32 %s, %s, 7' % (sB, sB))
    e('s_add_u32 %s, %s, %s' % (sA, sKV, sB))
    e('v_and_b32 %s, 48, v0' % v(t_s))
    e('v_bfe_u32 %s, v0, 2, 2' % v(tc))
    e('v_lshl_add_u32 %s, %s, 9, %s' % (v(aK), v(tc), v(t_s)))
    e('v_and_b32 %s, 2, v0' % v(tc))
    e('v_lshl_add_u32 %s, %s, 12, %s' % (v(aK), v(tc), v(aK)))
    e('v_and_b32 %s, 1, v0' % v(td))
    e('v_lshl_add_u32 %s, %s, 6, %s' % (v(aK), v(td), v(aK)))
    e('v_add_u32 %s, %s, %s' % (v(aK), sA, v(aK)))
    for t in range(1, 4): e('v_xor_b32 %s, 0x%x, %s' % (v(aK + t), t << 7, v(aK)))
    e('s_add_u32 s58, s6, 0x4000'); e('s_addc_u32 s59, s7, 0')
    cm("V address: base + (16r + 4w + s)*512 + ((hf ^ (c&1))<<8) + (l&15)*16")
    e('v_and_b32 %s, 15, v0' % v(tc))
    e('s_and_b32 %s, %s, 1' % (sA, sC)); e('s_lshl_b32 %s, %s, 8' % (sA, sA)); e('s_add_u32 %s, %s, %s' % (sA, sA, sKV))
    e('v_lshlrev_b32 %s, 5, %s' % (v(aV), v(t_s)))
    e('v_lshl_add_u32 %s, %s, 4, %s' % (v(aV), v(tc), v(aV)))
    e('v_add_u32 %s, %s, %s' % (v(aV), sA, v(aV)))
    e('v_xor_b32 %s, 0x100, %s' % (v(aV + 1), v(aV)))
    for r in range(1, 4):
        e('s_add_u32 s%d, s8, 0x%x' % (sPn[r - 1], 0x2000 * r)); e('s_addc_u32 s%d, s9, 0' % (sPn[r - 1] + 1))
    e('v_bfe_u32 v2, v0, 3, 3'); e('v_and_b32 v3, 7, v0')
    cm('partial-o publish: ((h*32 + (t>>3))*32 + c)*128 + (t&7)*16')
    e('s_lshl_b32 %s, %s, 17' % (sD, sH)); e('s_add_u32 %s, %s, %d' % (sD, sD, WS_O))
    e('s_lshl_b32 %s, %s, 7' % (sB, sC)); e('s_add_u32 %s, %s, %s' % (sA, sD, sB))
    e('v_lshrrev_b32 %s, 3, v0' % v(tc))
    e('v_lshl_add_u32 %s, v3, 4, %s' % (v(aO), sA))
    e('v_lshl_add_u32 %s, %s, 12, %s' % (v(aO), v(tc), v(aO)))
    cm('q gather: h*8192 + (l>>5)*4096 + w*512 + (l&31)*16 (+2048)')
    e('s_lshl_b32 %s, %s, 13' % (sA, sH)); e('s_lshl_b32 %s, %s, 9' % (sB, sW)); e('s_add_u32 %s, %s, %s' % (sA, sA, sB))
    e('s_add_u32 %s, %s, %d' % (sA, sA, WS_QF))
    e('v_and_b32 %s, 31, v0' % v(tc))
    e('v_lshl_add_u32 %s, %s, 4, %s' % (v(aQ), v(tc), sA))
    e('v_and_b32 %s, 32, v0' % v(tc))
    e('v_lshl_add_u32 %s, %s, 7, %s' % (v(aQ), v(tc), v(aQ)))
    e('s_lshr_b32 %s, %s, 1' % (sLC, sC))
    e('v_mov_b32 %s, 0' % v(vB1))
    e('s_and_b32 %s, %s, 3' % (sA, sC))
    e('s_cbranch_scc1 L_setN')
    cm('C: aX0 = gather (producer (l>>2)&7 (+8i), pair (l&3)+4*(l>>5)), aX1 = packet publish (granule ((l>>1)&1)+2*(l>>5), copy (l>>2)&7)')
    e('s_add_u32 %s, %s, %s' % (sB, sC, sW))
    e('s_lshl_b32 %s, %s, 12' % (sA, sB)); e('s_add_u32 %s, %s, %s' % (sA, sA, sD))
    e('v_lshl_add_u32 %s, %s, 1, %s' % (v(aX0), v(tc), sA))
    e('v_and_b32 %s, 3, v0' % v(td)); e('v_lshl_add_u32 %s, %s, 4, %s' % (v(aX0), v(td), v(aX0)))
    e('v_and_b32 %s, 28, v0' % v(td)); e('v_lshl_add_u32 %s, %s, 5, %s' % (v(aX0), v(td), v(aX0)))
    e('s_lshl_b32 %s, %s, 11' % (sA, sH))
    e('s_and_b32 %s, %s, 8' % (sD, sB)); e('s_lshl_b32 %s, %s, 7' % (sD, sD)); e('s_add_u32 %s, %s, %s' % (sA, sA, sD))
    e('s_and_b32 %s, %s, 16' % (sD, sB)); e('s_lshl_b32 %s, %s, 5' % (sD, sD)); e('s_add_u32 %s, %s, %s' % (sA, sA, sD))
    e('s_and_b32 %s, %s, 7' % (sD, sB)); e('s_lshl_b32 %s, %s, 6' % (sD, sD)); e('s_add_u32 %s, %s, %s' % (sA, sA, sD))
    e('s_add_u32 %s, %s, %d' % (sA, sA, WS_P))
    e('v_add_u32 %s, %s, %s' % (v(aX1), sA, v(tc)))
    if copies: e('v_lshl_add_u32 %s, %s, 12, %s' % (v(aX1), v(td), v(aX1)))
    e('v_and_b32 %s, 2, v0' % v(tc)); e('v_lshl_add_u32 %s, %s, 3, %s' % (v(aX1), v(tc), v(aX1)))
    e('v_mov_b32 %s, 0' % v(aX2)); e('v_mov_b32 %s, 0' % v(aR))
    e('s_branch L_setJ')
    lab('L_setN')
    e('s_min_u32 %s, %s, 6' % (sD, sH)); e('s_lshl_b32 %s, %s, 7' % (sD, sD))
    e('s_bitcmp1_b32 %s, 0' % sC)
    e('s_cbranch_scc0 L_setF')
    cm("O: aX0/aX1 = wo rows 256*(c>>1) + (w>>1)*128 + ((l>>3) + 8i)*8 + (w&1)*4 + r, aX2 = packet gather")
    e('s_lshl_b32 %s, %s, 8' % (sA, sLC))
    e('s_and_b32 %s, %s, 2' % (sB, sW)); e('s_lshl_b32 %s, %s, 6' % (sB, sB)); e('s_add_u32 %s, %s, %s' % (sA, sA, sB))
    e('s_and_b32 %s, %s, 1' % (sB, sW)); e('s_lshl2_add_u32 %s, %s, %s' % (sA, sB, sA))
    e('s_mul_i32 %s, %s, 896' % (sA, sA)); e('s_add_u32 %s, %s, %s' % (sA, sA, sD))
    e('v_mul_u32_u24 %s, 7168, v2' % v(aX0))
    e('v_lshl_add_u32 %s, v3, 4, %s' % (v(aX0), v(aX0)))
    e('v_add_u32 %s, %s, %s' % (v(aX0), sA, v(aX0)))
    e('v_add_u32 %s, 57344, %s' % (v(aX1), v(aX0)))
    e('s_lshl2_add_u32 %s, %s, %s' % (sB, sLC, sW))
    e('s_lshl_b32 %s, %s, 8' % (sA, sB))
    if copies: e('s_lshl_b32 %s, %s, 14' % (sD, sH)); e('s_add_u32 %s, %s, %s' % (sA, sA, sD))
    e('s_add_u32 %s, %s, %d' % (sA, sA, WS_P))
    e('v_lshl_add_u32 %s, v2, 4, %s' % (v(aX2), sA))
    e('s_branch L_setR')
    lab('L_setF')
    cm("F: aX0/aX1 = w2 rows 224*(c>>2) + 56w + 8*min(l>>3,6) + t, aX2 = h gather (partial l&3, granule (l>>2)&1), vB1 = b1 address")
    e('s_and_b32 %s, %s, -4' % (sB, sC)); e('s_add_u32 %s, %s, %s' % (sB, sB, sW))
    e('s_mul_i32 %s, %s, 56' % (sA, sB))
    e('s_add_u32 %s, %s, 64' % (sB, sB))
    e('v_min_u32 %s, 6, v2' % v(tc))
    e('v_lshl_add_u32 %s, %s, 3, %s' % (v(tc), v(tc), sA))
    e('v_mul_u32_u24 %s, 896, %s' % (v(aX0), v(tc)))
    e('v_lshl_add_u32 %s, v3, 4, %s' % (v(aX0), v(aX0)))
    e('v_add_u32 %s, %s, %s' % (v(aX0), sD, v(aX0)))
    e('v_add_u32 %s, 3584, %s' % (v(aX1), v(aX0)))
    e('v_add_lshl_u32 %s, %s, v3, 1' % (v(vB1), v(tc)))
    e('v_and_b32 %s, 4, v0' % v(td)); e('v_add_lshl_u32 %s, %s, %s, 2' % (v(aX2), v(tc), v(td)))
    e('v_and_b32 %s, 3, v0' % v(td)); e('v_mul_u32_u24 %s, 7168, %s' % (v(td), v(td)))
    e('v_add_u32 %s, %s, %s' % (v(aX2), v(td), v(aX2)))
    e('v_add_u32 %s, %d, %s' % (v(aX2), WS_H, v(aX2)))
    lab('L_setR')
    cm('out-partial publish: h*32768 + ((l&7)*2 + ((l>>4)&1))*2048 + slot*16')
    e('s_lshl_b32 %s, %s, 15' % (sD, sH))
    e('s_lshl4_add_u32 %s, %s, %s' % (sA, sB, sD)); e('s_add_u32 %s, %s, %d' % (sA, sA, WS_R))
    e('v_lshl_add_u32 %s, v3, 12, %s' % (v(aR), sA))
    e('v_and_b32 %s, 16, v0' % v(tc))
    e('v_lshl_add_u32 %s, %s, 7, %s' % (v(aR), v(tc), v(aR)))
    lab('L_setJ')
    masks(vM, tc, td)
    e('v_mov_b32 %s, 0xff' % v(vFF))
    e('s_mov_b32 %s, 0xffff0000' % sHi)
    e('s_mov_b32 %s, %s' % (sCexp, hx(f2u(math.log2(math.e) / 16.0))))
    e('v_mov_b32 %s, 0x0c0c0c0c' % v(tc)); e('s_mov_b32 %s, 0x03020302' % sB)
    for r in range(4): e('v_bfi_b32 %s, %s, %s, %s' % (v(vSel + r), v(vM + r), sB, v(tc)))
    e('v_mov_b32 %s, 0' % v(vZ))
    seq = []
    fill = []
    def f(s): fill.append(s)
    def gap(n=2):
        for _ in range(n):
            if fill: e(fill.pop(0))
    def kload(i):
        o, t = i >> 2, i & 3
        e('global_load_dwordx4 %s, %s, %s%s' % (vr(vKk + 16 * o + 4 * t, 4), v(aK + t), sK if o == 0 else sPK, NT)); seq.append('k%d' % i); gap()
    def vload(i):
        r, hf = i >> 1, i & 1
        e('global_load_dwordx4 %s, %s, %s%s' % (vr(vVv + 8 * r + 4 * hf, 4), v(aV + hf), sV if r == 0 else sP[r - 1], NT)); seq.append('v%d' % i); gap()
    def qpoll(dst):
        e('global_load_dwordx4 %s, %s, %s sc1' % (vr(dst, 4), v(aQ), sWs))
        e('global_load_dwordx4 %s, %s, %s offset:2048 sc1' % (vr(dst + 4, 4), v(aQ), sWs))
    def waitfor(name, sq=None):
        sq = seq if sq is None else sq
        e('s_waitcnt vmcnt(%d)' % (len(sq) - 1 - sq.index(name)))
    f('s_lshl_b32 %s, %s, 8' % (sA, sW))
    f('v_lshl_add_u32 %s, v3, 4, %s' % (v(l_qw), sA))
    f('v_and_b32 %s, 8, v0' % v(tc)); f('v_add_u32 %s, %s, %s' % (v(l_qw), v(l_qw), v(tc)))
    f('v_and_b32 %s, 16, v0' % v(td)); f('v_lshl_add_u32 %s, %s, 3, %s' % (v(l_qw), v(td), v(l_qw)))
    f('v_bfe_u32 %s, v0, 5, 1' % v(td)); f('v_lshl_add_u32 %s, %s, 2, %s' % (v(l_qw), v(td), v(l_qw)))
    f('s_and_b32 %s, %s, 2' % (sA, sW)); f('s_lshl_b32 %s, %s, 6' % (sA, sA))
    f('v_xor_b32 %s, %s, %s' % (v(l_qw), sA, v(l_qw)))
    f('v_mul_u32_u24 %s, %d, %s' % (v(l_qr), (512 + 128) // 8, v(tc)))
    f('v_and_b32 %s, 1, v0' % v(td)); f('v_lshl_add_u32 %s, %s, 6, %s' % (v(l_qr), v(td), v(l_qr)))
    f('v_add_u32 %s, %s, %s' % (v(l_qr), v(l_qr), v(t_s)))
    f('s_and_b32 %s, %s, 3' % (sA, sC)); f('s_lshl_b32 %s, %s, 7' % (sA, sA))
    f('v_xor_b32 %s, %s, %s' % (v(l_qr), sA, v(l_qr)))
    for t in range(1, 4): f('v_xor_b32 %s, 0x%x, %s' % (v(l_qr + t), t << 7, v(l_qr)))
    f('s_lshl_b32 %s, %s, 2' % (sA, sW))
    f('v_lshl_add_u32 %s, %s, 2, %s' % (v(l_ml), v(tc), sA))
    f('s_lshl_b32 %s, %s, 1' % (sA, sW)); f('s_and_b32 %s, %s, 1' % (sB, sC)); f('s_add_u32 %s, %s, %s' % (sA, sA, sB)); f('s_lshl_b32 %s, %s, 10' % (sA, sA))
    f('v_and_b32 %s, 63, v0' % v(td))
    f('v_lshl_add_u32 %s, %s, 4, %s' % (v(l_ow), v(td), sA))
    f('v_xor_b32 %s, 0x400, %s' % (v(l_ow + 1), v(l_ow)))
    f('v_lshlrev_b32 %s, 3, v0' % v(l_or))
    f('s_and_b32 %s, %s, 1' % (sA, sW)); f('s_lshl_b32 %s, %s, 5' % (sA, sA))
    f('v_mov_b32 %s, %s' % (v(l_mr), sA))
    f('s_mov_b32 %s, %d' % (sCnt, spin_cap))
    f('v_mov_b32 %s, 0' % v(vFl))
    e('s_barrier')
    cm('the number of K loads in front of the q publish depends on what G has already queued')
    for i in range(kE): kload(i)
    e('s_bitcmp1_b32 %s, 0' % sC); e('s_cbranch_scc1 L_k1')
    e('s_barrier')
    lab('L_k1')
    for i in range(kE, kO): kload(i)
    stamp('Kiss')
    e('s_bitcmp1_b32 %s, 0' % sC); e('s_cbranch_scc0 L_k2')
    e('s_barrier')
    lab('L_k2')
    for i in range(kO, 8): kload(i)
    for i in range(P): vload(i)
    if P < 8: e('s_barrier')
    qpoll(vG); seq += ['q0', 'q1']; gap()
    for i in range(P, 8): vload(i)
    qpoll(vG + 8); seq += ['r0', 'r1']
    e('s_barrier')
    stamp('Viss')
    gap(100)
    e('s_waitcnt lgkmcnt(0)')
    tagcalc()
    waitfor('q1')
    stamp('qarr')
    lab('L_qchk')
    for k in range(8): e('v_xor_b32 %s, %s, %s' % (v(vG + k), sTq if (k & 3) == 0 else sTb[k & 3], v(vG + k)))
    e('v_or3_b32 %s, %s, %s, %s' % (v(tc), v(vG + 1), v(vG + 2), v(vG + 3)))
    e('v_or3_b32 %s, %s, %s, %s' % (v(tc), v(tc), v(vG + 5), v(vG + 6)))
    e('v_or3_b32 %s, %s, %s, %s' % (v(td), v(vG), v(vG + 4), v(vG + 7)))
    e('v_bitop3_b32 %s, %s, %s, %s bitop3:0xa8' % (v(td), v(tc), v(td), v(vFF)))
    e('v_cmp_ne_u32 vcc, 0, %s' % v(td))
    e('s_cbranch_vccnz L_qslow')
    lab('L_qok')
    e('v_pk_add_f32 %s, %s, %s' % (vr(vG, 2), vr(vG, 2), vr(vG + 4, 2)))
    e('v_pk_add_f32 %s, %s, %s' % (vr(vG + 2, 2), vr(vG + 2, 2), vr(vG + 6, 2)))
    e('ds_write_b32 %s, %s offset:%d' % (v(l_ml), v(vFl), FL))
    e('v_permlane32_swap_b32 %s, %s' % (v(vG), v(vG + 2)))
    e('v_permlane32_swap_b32 %s, %s' % (v(vG + 1), v(vG + 3)))
    e('v_pk_add_f32 %s, %s, %s' % (vr(vG, 2), vr(vG, 2), vr(vG + 2, 2)))
    e('v_cvt_pk_bf16_f32 %s, %s, %s' % (v(vG), v(vG), v(vG + 1)))
    e('ds_write_b32 %s, %s offset:%d' % (v(l_qw), v(vG), QB))
    e('s_waitcnt lgkmcnt(0)')
    e('s_barrier')
    for t in range(4): e('ds_read_b128 %s, %s offset:%d' % (vr(vQB + 4 * t, 4), v(l_qr + t), QB))
    e('ds_read_b128 %s, %s offset:%d' % (vr(vFl, 4), v(vZ), FL))
    cm('scores: rows (key, 64-byte half), columns (head, half); the matching halves are added below')
    for t in range(4):
        e('s_waitcnt lgkmcnt(%d)' % (4 - t))
        for o in range(2): mfma(vD + 4 * o, vKk + 16 * o + 4 * t, vQB + 4 * t, t == 0)
    e('s_waitcnt lgkmcnt(0)')
    e('v_or3_b32 %s, %s, %s, %s' % (v(vFl), v(vFl), v(vFl + 1), v(vFl + 2)))
    e('v_or_b32 %s, %s, %s' % (v(vFl), v(vFl), v(vFl + 3)))
    e('v_add_u32 %s, %s, %s' % (v(aO), v(aO), v(vFl)))
    e('v_add_u32 %s, %s, %s' % (v(aR), v(aR), v(vFl)))
    e('v_readfirstlane_b32 %s, %s' % (sNU, v(vFl)))
    sc = vG; m0, m1 = vG + 4, vG + 5
    for r in range(4): e('v_mov_b32_dpp %s, %s quad_perm:[1,1,3,3] %s' % (v(sc + r), v(vD + 2 * r + 1), FULL))
    for r in range(4): e('v_add_f32_dpp %s, %s, %s quad_perm:[0,0,2,2] %s' % (v(sc + r), v(vD + 2 * r), v(sc + r), FULL))
    e('v_cvt_pk_bf16_f32 %s, %s, %s' % (v(sc + 1), v(sc), v(sc + 1)))
    e('v_cvt_pk_bf16_f32 %s, %s, %s' % (v(sc + 3), v(sc + 2), v(sc + 3)))
    e('v_lshlrev_b32 %s, 16, %s' % (v(sc), v(sc + 1)))
    e('v_and_b32 %s, %s, %s' % (v(sc + 1), sHi, v(sc + 1)))
    e('v_lshlrev_b32 %s, 16, %s' % (v(sc + 2), v(sc + 3)))
    e('v_and_b32 %s, %s, %s' % (v(sc + 3), sHi, v(sc + 3)))
    cm('softmax over the 16 keys of this wave with their true maximum')
    e('v_max3_f32 %s, %s, %s, %s' % (v(m0), v(sc), v(sc + 1), v(sc + 2)))
    e('v_max_f32 %s, %s, %s' % (v(m1), v(m0), v(sc + 3)))
    e('v_max_f32 %s, %s, %s' % (v(m0), v(m0), v(sc + 3)))
    e('v_permlane32_swap_b32 %s, %s' % (v(m0), v(m1)))
    e('v_max_f32 %s, %s, %s' % (v(tc), v(m0), v(m1)))
    e('v_max_f32 %s, %s, %s' % (v(m1), v(m0), v(m1)))
    e('v_permlane16_swap_b32 %s, %s' % (v(tc), v(m1)))
    e('v_max_f32 %s, %s, %s' % (v(m0), v(tc), v(m1)))
    e('v_mul_f32 %s, %s, %s' % (v(m0), sCexp, v(m0)))
    for r in range(4): e('v_fma_f32 %s, %s, %s, -%s' % (v(sc + r), v(sc + r), sCexp, v(m0)))
    for r in range(4): e('v_exp_f32 %s, %s' % (v(sc + r), v(sc + r)))
    ls, l2, pk = vG + 5, vG + 6, vG + 7
    def ab(r):
        e('v_cvt_pk_bf16_f32 %s, %s, %s' % (v(pk), v(sc + r), v(sc + r)))
        for k in range(4): e('v_and_b32 %s, %s, %s' % (v(vA + 4 * r + k), v(pk), v(vM + k)))
    def pv(r):
        for hf in range(2):
            if 2 * r + hf >= P: waitfor('v%d' % (2 * r + hf))
            mfma(vD + 4 * hf, vA + 4 * r, vVv + 8 * r + 4 * hf, r == 0)
    e('v_add_f32 %s, %s, %s' % (v(ls), v(sc), v(sc + 1)))
    e('v_add_f32 %s, %s, %s' % (v(tc), v(sc + 2), v(sc + 3)))
    e('v_add_f32 %s, %s, %s' % (v(l2), v(ls), v(tc)))
    e('v_add_f32 %s, %s, %s' % (v(ls), v(ls), v(tc)))
    ab(0)
    e('v_permlane32_swap_b32 %s, %s' % (v(ls), v(l2)))
    e('v_add_f32 %s, %s, %s' % (v(tc), v(ls), v(l2)))
    e('v_add_f32 %s, %s, %s' % (v(l2), v(ls), v(l2)))
    npre = min(3, P // 2)
    if npre >= 1: pv(0)
    e('v_permlane16_swap_b32 %s, %s' % (v(tc), v(l2)))
    e('v_add_f32 %s, %s, %s' % (v(ls), v(tc), v(l2)))
    e('ds_write_b32 %s, %s offset:%d' % (v(l_ml), v(m0), ML))
    e('ds_write_b32 %s, %s offset:%d' % (v(l_ml), v(ls), ML + 16))
    ab(1)
    ab(2)
    if npre >= 2: pv(1)
    e('s_waitcnt lgkmcnt(0)')
    e('s_barrier')
    mm, ll, oo = vQB, vQB + 4, vQB + 8
    e('ds_read_b128 %s, %s offset:%d' % (vr(mm, 4), v(l_mr), ML))
    e('ds_read_b128 %s, %s offset:%d' % (vr(ll, 4), v(l_mr), ML + 16))
    ab(3)
    if npre >= 3: pv(2)
    pb = vG; mx = vG + 4; lt = vG + 5; rr = vG + 6
    e('v_mov_b32 %s, %s' % (v(pb + 3), sT))
    e('s_waitcnt lgkmcnt(1)')
    e('v_max3_f32 %s, %s, %s, %s' % (v(mx), v(mm), v(mm + 1), v(mm + 2)))
    e('v_max_f32 %s, %s, %s' % (v(mx), v(mx), v(mm + 3)))
    for k in range(2): e('v_pk_add_f32 %s, %s, %s %s' % (vr(mm + 2 * k, 2), vr(mm + 2 * k, 2), vr(mx, 2), NEG))
    for k in range(4): e('v_exp_f32 %s, %s' % (v(mm + k), v(mm + k)))
    e('s_waitcnt lgkmcnt(0)')
    e('v_mul_f32 %s, %s, %s' % (v(lt), v(mm), v(ll)))
    for k in range(1, 4): e('v_fmac_f32 %s, %s, %s' % (v(lt), v(mm + k), v(ll + k)))
    e('v_rcp_f32 %s, %s' % (v(rr), v(lt)))
    e('v_log_f32 %s, %s' % (v(lt), v(lt)))
    e('s_cmp_eq_u32 %s, 0' % sNU)
    stamp('smax')
    for r in range(npre, 4): pv(r)
    stamp('Varr')
    for k in range(2): e('v_pk_mul_f32 %s, %s, %s op_sel_hi:[1,0]' % (vr(mm + 2 * k, 2), vr(mm + 2 * k, 2), vr(rr, 2)))
    e('v_add_f32 %s, %s, %s' % (v(pb + 2), v(mx), v(lt)))
    e('v_mov_b32 %s, %s' % (v(td), sT))
    e('s_mov_b32 %s, 0x05040100' % sA); e('s_mov_b32 %s, 0x07060302' % sB)
    e('s_mov_b32 %s, %d' % (sCnt, spin_cap))
    e('ds_write_b128 %s, %s offset:%d' % (v(l_ow), vr(vD, 4), OL))
    e('ds_write_b128 %s, %s offset:%d' % (v(l_ow + 1), vr(vD + 4, 4), OL))
    e('s_waitcnt lgkmcnt(0)')
    e('s_barrier')
    for k in range(4): e('ds_read_b64 %s, %s offset:%d' % (vr(oo + 2 * k, 2), v(l_or), OL + 2048 * k))
    e('s_waitcnt lgkmcnt(3)')
    e('v_pk_mul_f32 %s, %s, %s op_sel_hi:[1,0]' % (vr(pb, 2), vr(oo, 2), vr(mm, 2)))
    e('s_waitcnt lgkmcnt(2)')
    e('v_pk_fma_f32 %s, %s, %s, %s op_sel:[0,1,0] op_sel_hi:[1,1,1]' % (vr(pb, 2), vr(oo + 2, 2), vr(mm, 2), vr(pb, 2)))
    e('s_waitcnt lgkmcnt(1)')
    e('v_pk_fma_f32 %s, %s, %s, %s op_sel_hi:[1,0,1]' % (vr(pb, 2), vr(oo + 4, 2), vr(mm + 2, 2), vr(pb, 2)))
    e('s_waitcnt lgkmcnt(0)')
    e('v_pk_fma_f32 %s, %s, %s, %s op_sel:[0,1,0] op_sel_hi:[1,1,1]' % (vr(pb, 2), vr(oo + 6, 2), vr(mm + 2, 2), vr(pb, 2)))
    e('s_cbranch_scc0 L_oslow')
    cm('publish {o0, o1, log2-sum-exp, T}; all 32 WGs of the group sit on one die (checked with q), so L2 is the meeting point')
    e('global_store_dwordx4 %s, %s, %s' % (v(aO), vr(pb, 4), sWs))
    lab('L_opub')
    stamp('opub')
    e('s_and_b32 %s, %s, 3' % (sD, sC))
    e('s_cbranch_scc1 L_N')
    gg = vKk
    e('v_add_u32 %s, %s, %s' % (v(aX0), sNU, v(aX0)))
    mx = vA; s0 = vA + 1; n0 = vA + 2; n1_ = vA + 3
    lab('L_ochk')
    for i in range(4): e('global_load_dwordx4 %s, %s, %s offset:%d sc1' % (vr(gg + 4 * i, 4), v(aX0), sWs, 1024 * i))
    e('s_sub_u32 %s, %s, 1' % (sCnt, sCnt))
    e('s_waitcnt vmcnt(0)')
    e('s_cbranch_scc1 L_ook')
    e('v_bitop3_b32 %s, %s, %s, %s bitop3:0x7e' % (v(tc), v(gg + 3), v(gg + 7), v(td)))
    e('v_bitop3_b32 %s, %s, %s, %s bitop3:0x7e' % (v(s0), v(gg + 11), v(gg + 15), v(td)))
    e('v_max3_f32 %s, %s, %s, %s' % (v(mx), v(gg + 2), v(gg + 6), v(gg + 10)))
    e('v_or_b32 %s, %s, %s' % (v(tc), v(tc), v(s0)))
    e('v_max_f32 %s, %s, %s' % (v(mx), v(mx), v(gg + 14)))
    e('v_cmp_ne_u32 vcc, 0, %s' % v(tc))
    e('s_cbranch_vccnz L_ochk')
    lab('L_ook')
    stamp('ogath')
    cm('combine the 32 key chunks')
    e('v_max_f32_dpp %s, %s, %s row_ror:4 %s' % (v(mx), v(mx), v(mx), FULL))
    e('v_max_f32_dpp %s, %s, %s row_ror:8 %s' % (v(s0), v(mx), v(mx), FULL))
    e('v_max_f32_dpp %s, %s, %s row_ror:8 %s' % (v(mx), v(mx), v(mx), FULL))
    e('v_permlane16_swap_b32 %s, %s' % (v(mx), v(s0)))
    e('v_max_f32 %s, %s, %s' % (v(mx), v(mx), v(s0)))
    for i in range(4): e('v_sub_f32 %s, %s, %s' % (v(gg + 4 * i + 2), v(gg + 4 * i + 2), v(mx)))
    for i in range(4): e('v_exp_f32 %s, %s' % (v(gg + 4 * i + 2), v(gg + 4 * i + 2)))
    e('v_add_f32 %s, %s, %s' % (v(s0), v(gg + 2), v(gg + 6)))
    e('v_pk_mul_f32 %s, %s, %s op_sel_hi:[1,0]' % (vr(n0, 2), vr(gg, 2), vr(gg + 2, 2)))
    e('v_add_f32 %s, %s, %s' % (v(s0), v(s0), v(gg + 10)))
    e('v_pk_fma_f32 %s, %s, %s, %s op_sel_hi:[1,0,1]' % (vr(n0, 2), vr(gg + 4, 2), vr(gg + 6, 2), vr(n0, 2)))
    e('v_add_f32 %s, %s, %s' % (v(s0), v(s0), v(gg + 14)))
    e('v_pk_fma_f32 %s, %s, %s, %s op_sel_hi:[1,0,1]' % (vr(n0, 2), vr(gg + 8, 2), vr(gg + 10, 2), vr(n0, 2)))
    e('v_pk_fma_f32 %s, %s, %s, %s op_sel_hi:[1,0,1]' % (vr(n0, 2), vr(gg + 12, 2), vr(gg + 14, 2), vr(n0, 2)))
    for r in (s0, n0, n1_): e('v_add_f32_dpp %s, %s, %s row_ror:4 %s' % (v(r), v(r), v(r), FULL))
    for r in (s0, n0, n1_):
        e('v_add_f32_dpp %s, %s, %s row_ror:8 %s' % (v(r + 4), v(r), v(r), FULL))
        e('v_add_f32_dpp %s, %s, %s row_ror:8 %s' % (v(r), v(r), v(r), FULL))
    for r in (s0, n0, n1_): e('v_permlane16_swap_b32 %s, %s' % (v(r), v(r + 4)))
    e('v_add_f32 %s, %s, %s' % (v(s0), v(s0), v(s0 + 4)))
    e('v_pk_add_f32 %s, %s, %s' % (vr(n0, 2), vr(n0, 2), vr(n0 + 4, 2)))
    e('v_rcp_f32 %s, %s' % (v(mx), v(s0)))
    e('v_pk_mul_f32 %s, %s, %s op_sel_hi:[1,0]' % (vr(n0, 2), vr(n0, 2), vr(mx, 2)))
    e('v_cvt_pk_bf16_f32 %s, %s, %s' % (v(n0), v(n0), v(n1_)))
    pp = vA + 8
    e('v_perm_b32 %s, %s, %s, %s' % (v(pp), v(n0), v(td), sA))
    e('v_perm_b32 %s, %s, %s, %s' % (v(pp + 1), v(n0), v(td), sB))
    e('v_mov_b32_dpp %s, %s quad_perm:[1,1,3,3] %s' % (v(pp + 2), v(pp), FULL))
    e('v_mov_b32_dpp %s, %s quad_perm:[1,1,3,3] %s' % (v(pp + 3), v(pp + 1), FULL))
    mk = '0x05555555' if copies else '5'
    e('s_mov_b32 exec_lo, %s' % mk); e('s_mov_b32 exec_hi, %s' % mk)
    e('global_store_dwordx4 %s, %s, %s sc1' % (v(aX1), vr(pp, 4), sWs))
    stamp('ppub')
    e('s_cmp_eq_u32 %s, 7' % sH); e('s_cbranch_scc1 L_fin')
    e('s_barrier')
    done()
    L.extend(GT)
    lab('L_N')
    e('s_cmp_eq_u32 %s, 7' % sH); e('s_cbranch_scc1 L_fin')
    e('s_cmp_eq_u32 %s, 2' % sD); e('s_cbranch_scc1 L_F')
    def wload(t, base):
        e('global_load_dwordx4 %s, %s, %s offset:%d%s' % (vr(vWo + 4 * t, 4), v(aX0 + (t >> 2)), base, 896 * (t & 3), NT))
    pg = vKk; z = vG + 4
    def ppoll():
        for i in range(2): e('global_load_dwordx4 %s, %s, %s offset:%d sc1' % (vr(pg + 4 * i, 4), v(aX2), sWs, 128 * i))
    for t in range(8):
        wload(t, sWo)
        if t < 7: e('v_mov_b32 %s, 0' % v(vAcc + t)); e('s_cmp_eq_u32 %s, 0' % sNU)
    e('s_cselect_b32 %s, 1, 0' % sD)
    e('s_waitcnt vmcnt(%d)' % pgate)
    if stamps: ppoll(); e('s_waitcnt vmcnt(2)'); stamp('wgot'); e('s_branch L_pchk0')
    lab('L_pchk')
    ppoll()
    lab('L_pchk0')
    e('s_sub_u32 %s, %s, 1' % (sCnt, sCnt))
    e('s_waitcnt vmcnt(0)')
    e('s_cbranch_scc1 L_pok')
    for k in range(4): e('v_perm_b32 %s, %s, %s, %s' % (v(z + k), v(pg + 2 * k + 1), v(pg + 2 * k), sA))
    e('v_bitop3_b32 %s, %s, %s, %s bitop3:0x7e' % (v(z), v(z), v(z + 1), v(td)))
    e('v_bitop3_b32 %s, %s, %s, %s bitop3:0x7e' % (v(z + 2), v(z + 2), v(z + 3), v(td)))
    e('v_or_b32 %s, %s, %s' % (v(z), v(z), v(z + 2)))
    e('v_cmp_ne_u32 vcc, 0, %s' % v(z))
    e('s_cbranch_vccnz L_pchk')
    lab('L_pok')
    stamp('pgot')
    for t in range(8):
        for k in range(4): e('v_perm_b32 %s, %s, %s, %s' % (v(vA + 4 * (t & 3) + k), v(pg + t), v(pg + t), v(vSel + k)))
        if t > 0: mfma(vAcc, vA + 4 * ((t - 1) & 3), vWo + 4 * (t - 1), t == 1)
    lab('L_last1')
    e('s_cmp_eq_u32 %s, 1' % sD)
    mfma(vAcc, vA + 12, vWo + 28, False)
    fixup_tag(vAcc, vAcc + 4, sTb, vFF)
    e('s_cbranch_scc0 L_rslow')
    e('global_store_dwordx4 %s, %s, %s' % (v(aR), vr(vAcc, 4), sWs))
    lab('L_rpub')
    stamp('rpub')
    e('s_bitcmp1_b32 %s, 0' % sC); e('s_cbranch_scc1 L_fin')
    e('s_barrier')
    done()
    lab('L_F')
    hg = vKk
    sq = [('w', t) for t in range(8)]; sq = sq[:hidx] + ['h', 'b1'] + sq[hidx:]
    fl = ['v_and_b32 %s, 1, v0' % v(tc), 'v_cmp_eq_u32 %s, 1, %s' % (sM1, v(tc)), 'v_and_b32 %s, 2, v0' % v(tc), 'v_cmp_eq_u32 %s, 2, %s' % (sM2, v(tc)),
          'v_cmp_gt_u32 %s, 7, v2' % sEx, 's_cmp_eq_u32 %s, 0' % sNU, 's_cselect_b32 %s, 1, 0' % sD] + ['v_mov_b32 %s, 0' % v(vAcc + k) for k in range(7)]
    for x_ in sq:
        if x_ == 'h': e('global_load_dwordx4 %s, %s, %s sc1' % (vr(hg, 4), v(aX2), sWs))
        elif x_ == 'b1': e('global_load_ushort %s, %s, %s' % (v(vB1), v(vB1), sB1))
        else:
            wload(x_[1], sW2)
            for _ in range(2):
                if fl: e(fl.pop(0))
    waitfor('b1', sq)
    lab('L_hchk')
    for k in range(4): e('v_xor_b32 %s, %s, %s' % (v(hg + k), sTb[k], v(hg + k)))
    e('v_or3_b32 %s, %s, %s, %s' % (v(tc), v(hg), v(hg + 1), v(hg + 2)))
    e('v_bitop3_b32 %s, %s, %s, %s bitop3:0xa8' % (v(tc), v(tc), v(hg + 3), v(vFF)))
    e('v_cmp_ne_u32 vcc, 0, %s' % v(tc))
    e('s_cbranch_vccnz L_hretry')
    lab('L_hok')
    stamp('pgot')
    for m in ['quad_perm:[1,0,3,2]', 'quad_perm:[2,3,0,1]']:
        for k in range(4): e('v_add_f32_dpp %s, %s, %s %s %s' % (v(hg + k), v(hg + k), v(hg + k), m, FULL))
    hv, h2, h3 = hg, hg + 1, hg + 2
    e('v_cndmask_b32 %s, %s, %s, %s' % (v(hg), v(hg), v(hg + 1), sM1))
    e('v_cndmask_b32 %s, %s, %s, %s' % (v(hg + 2), v(hg + 2), v(hg + 3), sM1))
    e('v_lshlrev_b32 %s, 16, %s' % (v(vB1), v(vB1)))
    e('v_cndmask_b32 %s, %s, %s, %s' % (v(hv), v(hg), v(hg + 2), sM2))
    e('v_cvt_pk_bf16_f32 %s, %s, %s' % (v(hv), v(hv), v(hv)))
    e('v_and_b32 %s, %s, %s' % (v(hv), sHi, v(hv)))
    e('v_add_f32 %s, %s, %s' % (v(hv), v(hv), v(vB1)))
    e('v_cvt_pk_bf16_f32 %s, %s, %s' % (v(hv), v(hv), v(hv)))
    e('v_and_b32 %s, %s, %s' % (v(hv), sHi, v(hv)))
    cm('gelu(tanh form) = x / (1 + exp(-2*sqrt(2/pi)*(x + 0.044715 x^3)))')
    k1 = -2.0 * math.log2(math.e) * math.sqrt(2.0 / math.pi)
    e('v_mul_f32 %s, %s, %s' % (v(h2), v(hv), v(hv)))
    e('v_mov_b32 %s, %s' % (v(h3), hx(f2u(k1))))
    e('v_fmac_f32 %s, %s, %s' % (v(h3), hx(f2u(k1 * 0.044715)), v(h2)))
    e('v_mul_f32 %s, %s, %s' % (v(h3), v(h3), v(hv)))
    e('v_exp_f32 %s, %s' % (v(h3), v(h3)))
    e('v_add_f32 %s, 1.0, %s' % (v(h3), v(h3)))
    e('v_rcp_f32 %s, %s' % (v(h3), v(h3)))
    e('v_mul_f32 %s, %s, %s' % (v(hv), v(hv), v(h3)))
    e('v_cvt_pk_bf16_f32 %s, %s, %s' % (v(hv), v(hv), v(hv)))
    e('v_cndmask_b32 %s, 0, %s, %s' % (v(h2), v(hv), sEx))
    e('v_cndmask_b32 %s, 0, %s, %s' % (v(h3), v(hv), sEx))
    e('v_cndmask_b32 %s, 0, %s, %s' % (v(hv), v(hv), sEx))
    e('v_mov_b32_dpp %s, %s row_shr:4 row_mask:0xf bank_mask:0xa' % (v(h2), v(hv)))
    e('v_mov_b32_dpp %s, %s row_shl:4 row_mask:0xf bank_mask:0x5' % (v(h3), v(hv)))
    for t in range(8):
        q_ = t & 3
        for k in range(4): e('v_and_b32_dpp %s, %s, %s quad_perm:[%d,%d,%d,%d] %s' % (v(vA + 4 * q_ + k), v(h2 if t < 4 else h3), v(vM + k), q_, q_, q_, q_, FULL))
        if t > 0:
            if t - 1 >= hidx: waitfor(('w', t - 1), sq)
            mfma(vAcc, vA + 4 * ((t - 1) & 3), vWo + 4 * (t - 1), t == 1)
    e('s_waitcnt vmcnt(0)')
    stamp('wgot')
    e('s_branch L_last1')
    lab('L_fin')
    if stamps:
        e('s_mov_b64 exec, -1')
        e('s_waitcnt vmcnt(0)')
        stamp('end', True)
        e('s_mov_b32 %s, 20000' % sCnt)
        lab('L_sd')
        e('s_memrealtime s[52:53]'); e('s_waitcnt lgkmcnt(0)'); e('s_sub_u32 s52, s52, s%d' % ST0)
        e('s_sub_u32 %s, %s, 1' % (sCnt, sCnt)); e('s_cbranch_scc1 L_sd2')
        e('s_cmp_lt_u32 s52, 1200'); e('s_cbranch_scc1 L_sd')
        lab('L_sd2')
        e('s_mov_b64 exec, 1')
        e('s_mul_i32 %s, s2, 5' % sA); e('s_add_u32 %s, %s, s3' % (sA, sA)); e('s_lshl_b32 %s, %s, 6' % (sA, sA))
        e('s_add_u32 %s, %s, %d' % (sA, sA, WS_T))
        e('v_mov_b32 v6, %s' % sA)
        for k in range(len(names)): e('v_mov_b32 v%d, s%d' % (8 + k, ST0 + 2 * k))
        e('s_getreg_b32 %s, hwreg(HW_REG_XCC_ID)' % sA)
        e('v_mov_b32 v22, %s' % sA); e('v_mov_b32 v23, s3')
        for k in range(4): e('global_store_dwordx4 v6, v[%d:%d], %s offset:%d%s' % (8 + 4 * k, 11 + 4 * k, sWs, 16 * k, ' sc1' if diag else ''))
        if diag:
            import diaglib
            diaglib.emit(e, lab, diag, names, gnames, ST0, WS_T, sWs)
    lab('L_end')
    e('s_endpgm')
    def pubS():
        cm("device-scope copy of this WG's q granules")
        e('s_lshl_b32 %s, %s, 13' % (sA, sH)); e('s_lshl_b32 %s, %s, 8' % (sB, sC)); e('s_add_u32 %s, %s, %s' % (sA, sA, sB))
        e('s_add_u32 %s, %s, %d' % (sA, sA, WS_QF + QS_X))
        e('v_and_b32 %s, 31, v0' % v(tc)); e('v_lshlrev_b32 %s, 4, %s' % (v(tc), v(tc)))
        e('ds_read_b128 %s, %s offset:%d' % (vr(vQB, 4), v(tc), QG))
        e('v_lshl_add_u32 %s, v3, 4, %s' % (v(tc), sA))
        e('v_and_b32 %s, 16, v0' % v(td)); e('v_lshl_add_u32 %s, %s, 3, %s' % (v(tc), v(td), v(tc)))
        e('s_mov_b64 exec, 0x00ff00ff')
        e('s_waitcnt lgkmcnt(0)')
        e('global_store_dwordx4 %s, %s, %s sc1' % (v(tc), vr(vQB, 4), sWs))
        e('s_mov_b64 exec, -1')
    lab('L_qslow')
    e('v_or_b32 %s, %s, %s' % (v(td), v(vG), v(vG + 4)))
    e('v_and_b32 %s, 0xf0, %s' % (v(td), v(td)))
    e('v_or3_b32 %s, %s, %s, %s' % (v(td), v(tc), v(vG + 7), v(td)))
    e('v_and_b32 %s, %s, %s' % (v(td), v(vFF), v(td)))
    e('v_cmp_ne_u32 vcc, 0, %s' % v(td))
    e('s_cbranch_vccnz L_qretry')
    cm('valid, but some producer sits on another die: the whole group switches to device-scope hand-offs')
    e('v_mov_b32 %s, 0x%x' % (v(vFl), OS_SLOW))
    e('v_and_b32 %s, -16, %s' % (v(vG), v(vG)))
    e('v_and_b32 %s, -16, %s' % (v(vG + 4), v(vG + 4)))
    pubS()
    e('s_branch L_qok')
    lab('L_qretry')
    stamp('qfail', True)
    e('s_sub_u32 %s, %s, 1' % (sCnt, sCnt))
    e('s_cbranch_scc1 L_qok')
    e('s_cmp_eq_u32 %s, %d' % (sCnt, spin_cap - 1))
    e('s_cbranch_scc0 L_qre2')
    waitfor('r1')
    for k in range(8): e('v_mov_b32 %s, %s' % (v(vG + k), v(vG + 8 + k)))
    e('s_branch L_qchk')
    lab('L_qre2')
    e('s_cmp_gt_u32 %s, %d' % (sCnt, max(spin_cap - fretry, 0)))
    e('s_cbranch_scc1 L_qre3')
    cm('still nothing: publish at device scope and poll both copies in turn')
    e('v_xor_b32 %s, 0x%x, %s' % (v(aQ), QS_X, v(aQ)))
    e('s_cmp_eq_u32 %s, %d' % (sCnt, max(spin_cap - fretry, 0)))
    e('s_cbranch_scc0 L_qre3')
    pubS()
    lab('L_qre3')
    qpoll(vG)
    e('s_waitcnt vmcnt(0)')
    e('s_branch L_qchk')
    lab('L_hretry')
    stamp('ppub', True)
    e('s_sub_u32 %s, %s, 1' % (sCnt, sCnt))
    e('s_cbranch_scc1 L_hok')
    e('global_load_dwordx4 %s, %s, %s sc1' % (vr(hg, 4), v(aX2), sWs))
    e('s_waitcnt vmcnt(0)')
    e('s_branch L_hchk')
    lab('L_oslow')
    e('global_store_dwordx4 %s, %s, %s sc1' % (v(aO), vr(pb, 4), sWs))
    e('s_branch L_opub')
    lab('L_rslow')
    e('global_store_dwordx4 %s, %s, %s sc1' % (v(aR), vr(vAcc, 4), sWs))
    e('s_branch L_rpub')
    body = fix_hazards(L)
    if hops:
        body = place_pads(body, [('L_pad0', 'L_hub', None, 256)] + [('L_pad%d' % k, 'L_hub', 'L_pad%d' % (k - 1), 1088) for k in range(1, 7)])
    hdr = open('cdna_kernels/%s.s.ref' % NAME).read().split('\n')
    hdr = [x for x in hdr if x.startswith(';') and '@launch' not in x]
    if stamps: hdr = ['; stampnames: ' + ' '.join(names)] + hdr
    out = hdr + ['; @launch grid=(256,1,1) block=(320,1,1) lds=%d' % LDS,
        '.amdgcn_target "amdgcn-amd-amdhsa--gfx950"', '.text', '.globl %s_kernel' % NAME, '.p2align 8',
        '.type %s_kernel,@function' % NAME, '%s_kernel:' % NAME] + body + [
        '.section .rodata,"a"', '.p2align 6', '.amdhsa_kernel %s_kernel' % NAME,
        '  .amdhsa_next_free_vgpr %d' % NV, '  .amdhsa_next_free_sgpr 96', '  .amdhsa_accum_offset %d' % NV,
        '  .amdhsa_group_segment_fixed_size 0', '  .amdhsa_kernarg_size 104', '  .amdhsa_user_sgpr_count 2',
        '  .amdhsa_user_sgpr_kernarg_segment_ptr 1', '  .amdhsa_system_sgpr_workgroup_id_x 1',
        '  .amdhsa_float_denorm_mode_32 3', '.end_amdhsa_kernel', '']
    return '\n'.join(out)

if __name__ == '__main__':
    kw = {}
    for a in sys.argv[2:]:
        k, x = a.split('=')
        try: x = eval(x)
        except Exception: pass
        kw[k] = x
    open(sys.argv[1], 'w').write(gen(**kw))
```

```python
import sys, math, struct
sys.path.insert(0, 'work')
from asmlib import fix_hazards, place_pads

NAME = 'parallel_sum__sliding_block_cached__dense_activation_gelu__decode'
def f2u(x): return struct.unpack('<I', struct.pack('<f', x))[0]
def hx(x): return '0x%08x' % (x & 0xffffffff)
def v(i): return 'v%d' % i
def vr(i, n): return 'v[%d:%d]' % (i, i + n - 1)
FULL = 'row_mask:0xf bank_mask:0xf'
NEG = 'op_sel_hi:[1,0] neg_lo:[0,1] neg_hi:[0,1]'

def gen(stamps=False, spin_cap=200000, force_slow=False, diag=None, P=4, bar0='ln', kE=3, kO=6, hops=True, copies=True,
        outflag='', pgate=3, hidx=3, fretry=8, rdepth=1, preb1=True, preO='nt.sc1', preR='nt.sc1', preQ='nt.sc1', NTs='nt', prepos='W'):
    L = []
    def e(s): L.append('    ' + s)
    def lab(s): L.append(s + ':')
    def cm(s): L.append('    ; ' + s)
    NT = ' ' + NTs.replace('_', '')
    def preread(dst, a, fl):
        for x_ in fl.split('.'): e('global_load_dword %s, %s, %s %s' % (v(dst), v(a), sWs, x_.replace('_', '')))
    WS_E = 0; WS_H = 0x1000; WS_QF = 0x10000; QS_X = 0x20000; WS_P = 0x40000; WS_R = 0x80000; WS_O = 0x100000
    OS_SLOW = 0x200000; WS_T = 0x200000
    XN = 0; QB = 1024; FL = 2048; ML = 2112; QG = 2560; OL = 4096; LDS = OL + 8192
    sX, sK, sV, sWq, sWo, sW1, sB1 = 's[4:5]', 's[6:7]', 's[8:9]', 's[10:11]', 's[12:13]', 's[16:17]', 's[18:19]'
    sW2, sB2, sOut, sWs = 's[20:21]', 's[22:23]', 's[24:25]', 's[28:29]'
    sH, sC, sKV, sT, sW, sA, sB, sCnt, sHi, sCexp, sStep, sLC, sTq, sNU = ['s%d' % i for i in range(30, 44)]
    sTb = ['s44', 's45', 's46', 's47']
    sP = ['s[48:49]', 's[50:51]', 's[52:53]']; sPn = [48, 50, 52]
    sEx = 's[54:55]'; sPK = 's[58:59]'; sM1 = 's[56:57]'; sM2 = 's[60:61]'; sD = 's62'; sSel = 's63'
    ST0 = 64
    names = ['start', 'karg', 'Kiss', 'Viss', 'qarr', 'smax', 'Varr', 'opub', 'ogath', 'ppub', 'wgot', 'pgot', 'rpub', 'end']
    gnames = {'x': 'Kiss', 'wq': 'Viss', 'qpub': 'qarr', 'w1': 'smax', 'rgot': 'rpub', 'qfail': 'karg'}
    def stamp(n, wait=False):
        if stamps:
            k = names.index(gnames.get(n, n)); e('s_memrealtime s[%d:%d]' % (ST0 + 2 * k, ST0 + 2 * k + 1))
            if wait: e('s_waitcnt lgkmcnt(0)')
    def done(): e('s_branch L_fin') if stamps else e('s_endpgm')
    def tagcalc():
        cm('launch tag T = epoch + const; byte k of T tags word k of a 16-byte granule; the q granules also carry the die id')
        e('s_add_u32 %s, %s, 0x5b3d27c5' % (sT, sT))
        for k in range(4): e('s_bfe_u32 %s, %s, 0x%x' % (sTb[k], sT, 0x80000 | (8 * k)))
        e('s_getreg_b32 %s, hwreg(HW_REG_XCC_ID, 0, 4)' % sA)
        if force_slow: e('s_and_b32 %s, s2, 8' % sA)
        e('s_and_b32 %s, %s, 0xf0' % (sTq, sT))
        e('s_or_b32 %s, %s, %s' % (sTq, sTq, sA))
    def masks(vM, t0, t1):
        cm('vM[r]: 16-bit mask of element (lane&7) inside an 8-element MFMA operand')
        e('v_and_b32 %s, 1, v0' % v(t0))
        e('v_lshlrev_b32 %s, 4, %s' % (v(t0), v(t0)))
        e('v_mov_b32 %s, 0xffff' % v(t1))
        e('v_lshlrev_b32 %s, %s, %s' % (v(t1), v(t0), v(t1)))
        e('v_bfe_u32 %s, v0, 1, 2' % v(t0))
        e('v_cmp_eq_u32 vcc, 0, %s' % v(t0)); e('v_cmp_eq_u32 %s, 1, %s' % (sM1, v(t0))); e('v_cmp_eq_u32 %s, 2, %s' % (sM2, v(t0)))
        e('v_cndmask_b32 %s, 0, %s, vcc' % (v(vM), v(t1)))
        e('v_cmp_eq_u32 vcc, 3, %s' % v(t0))
        e('v_cndmask_b32 %s, 0, %s, %s' % (v(vM + 1), v(t1), sM1)); e('v_cndmask_b32 %s, 0, %s, %s' % (v(vM + 2), v(t1), sM2))
        e('v_cndmask_b32 %s, 0, %s, vcc' % (v(vM + 3), v(t1)))
    def fixup_tag(D, J, tags, vFF):
        cm('add the two row-parity halves (lane l + lane l+40), tag; result in lanes 0-7 and 16-23')
        for r in range(4): e('v_permlane32_swap_b32 %s, %s' % (v(D + r), v(J + r)))
        for r in range(4): e('v_add_f32_dpp %s, %s, %s row_ror:8 %s' % (v(D + r), v(J + r), v(D + r), FULL))
        e('s_mov_b64 exec, 0x00ff00ff')
        for r in range(4): e('v_bfi_b32 %s, %s, %s, %s' % (v(D + r), v(vFF), tags[r], v(D + r)))
    def mfma(D, A, B, first): e('v_mfma_f32_16x16x32_bf16 %s, %s, %s, %s' % (vr(D, 4), vr(A, 4), vr(B, 4), '0' if first else vr(D, 4)))

    gXs = 4; gWq = 8; gA = 64; gSel = 88; gM = 96; gP = 100; gD = 108; gt = list(range(116, 136)); gW1 = 136
    a_wq, a_xs, a_w1, gFF, a_pub, a_h, g16, r_w1, l_xw, l_xr, junk = gt[0:11]
    ts, tm, tv = gt[12], gt[14], gt[16]
    e('s_load_dwordx16 s[4:19], s[0:1], 0')
    e('s_load_dwordx8 s[20:27], s[0:1], 64')
    e('s_load_dwordx2 s[28:29], s[0:1], 96')
    stamp('start')
    e('v_readfirstlane_b32 %s, v0' % sW)
    e('s_cmpk_ge_u32 s2, 0x100')
    e('s_cbranch_scc1 L_end')
    e('s_and_b32 %s, s2, 7' % sH)
    e('s_lshr_b32 %s, s2, 3' % sC)
    e('s_lshr_b32 %s, %s, 6' % (sW, sW))
    e('s_cbranch_scc0 L_G0')
    if hops:
        cm('the four waves that have nothing to do yet each start one instruction-fetch window (no memory op runs with EXEC=0)')
        e('s_mov_b64 exec, 0')
        e('s_mov_b32 %s, 0' % sSel)
        e('s_cmp_eq_u32 %s, 1' % sW); e('s_cbranch_scc1 L_pad0')
        e('s_cmp_eq_u32 %s, 2' % sW); e('s_cbranch_scc1 L_pad2')
        e('s_bitcmp1_b32 s2, 3'); e('s_cbranch_scc1 L_odd')
        e('s_bitcmp1_b32 %s, 0' % sW); e('s_cbranch_scc1 L_pad1')
        e('s_bitcmp1_b32 s2, 4'); e('s_cbranch_scc1 L_pad3'); e('s_branch L_pad5')
        lab('L_odd')
        e('s_bitcmp1_b32 %s, 0' % sW); e('s_cbranch_scc1 L_pad4'); e('s_branch L_pad6')
    else: e('s_branch L_A')
    lab('L_G0')
    cm('G wave: wq slice = 64 columns (h*8 + (c&7)) x 112 rows ((c>>3)*112 + (l>>3)*14 + t)')
    e('s_lshr_b32 %s, s2, 6' % sA)
    e('s_mul_i32 %s, %s, %d' % (sA, sA, 112 * 8192))
    e('s_and_b32 %s, %s, 7' % (sB, sC))
    e('s_lshl3_add_u32 %s, %s, %s' % (sB, sH, sB))
    e('s_lshl_b32 %s, %s, 7' % (sB, sB))
    e('s_add_u32 %s, %s, %s' % (sA, sA, sB))
    e('v_lshrrev_b32 v2, 3, v0')
    e('v_and_b32 v3, 7, v0')
    e('v_mul_u32_u24 %s, %d, v2' % (v(a_wq), 14 * 8192))
    e('v_lshl_add_u32 %s, v3, 4, %s' % (v(a_wq), v(a_wq)))
    e('v_add_u32 %s, %s, %s' % (v(a_wq), sA, v(a_wq)))
    e('v_min_u32 %s, 55, v0' % v(a_xs))
    e('v_lshlrev_b32 %s, 4, %s' % (v(a_xs), v(a_xs)))
    e('s_movk_i32 %s, 0x2000' % sStep)
    e('s_waitcnt lgkmcnt(0)')
    stamp('karg')
    e('global_load_dwordx4 %s, %s, %s' % (vr(gXs, 4), v(a_xs), sX))
    for t in range(14):
        e('global_load_dwordx4 %s, %s, %s%s' % (vr(gWq + 4 * t, 4), v(a_wq), sWq, NT))
        if t < 13: e('v_add_u32 %s, %s, %s' % (v(a_wq), sStep, v(a_wq)))
    e('s_load_dword %s, %s, %d' % (sT, sWs, WS_E))
    e('s_setprio 3')
    cm('q publish address: h*8192 + c*256 + ((l>>4)*8 + (l&7))*16 ; read it once so the lines are valid in L2')
    e('s_lshl_b32 %s, %s, 13' % (sA, sH)); e('s_lshl_b32 %s, %s, 8' % (sB, sC)); e('s_add_u32 %s, %s, %s' % (sA, sA, sB))
    e('s_add_u32 %s, %s, %d' % (sA, sA, WS_QF))
    e('v_lshl_add_u32 %s, v3, 4, %s' % (v(a_pub), sA))
    e('v_and_b32 %s, 16, v0' % v(g16))
    e('v_lshl_add_u32 %s, %s, 3, %s' % (v(a_pub), v(g16), v(a_pub)))
    preread(junk, a_pub, preQ); nq = len(preQ.split('.'))
    cm('w1 slice (even c, li = (c>>1)*8 + h < 112): 64 columns (li%28) x 112 rows ((li/28)*112 + (l>>3)*14 + t)')
    e('s_lshl2_add_u32 %s, %s, %s' % (sD, sC, sH))
    e('s_bitcmp1_b32 %s, 0' % sC)
    e('s_cselect_b32 %s, 127, %s' % (sD, sD))
    e('s_cmpk_lt_u32 %s, 112' % sD)
    e('s_cselect_b32 %s, 1, 0' % sNU)
    e('s_cbranch_scc0 L_Gno1')
    e('s_mul_i32 %s, %s, 2341' % (sLC, sD)); e('s_lshr_b32 %s, %s, 16' % (sLC, sLC))
    e('s_mul_i32 %s, %s, 28' % (sA, sLC)); e('s_sub_u32 %s, %s, %s' % (sD, sD, sA))
    e('s_mul_i32 %s, %s, 224' % (sB, sLC))
    e('v_mad_u32_u24 %s, v2, 28, %s' % (v(r_w1), sB))
    e('s_lshl_b32 %s, %s, 7' % (sA, sD))
    e('v_lshl_add_u32 %s, v3, 4, %s' % (v(a_w1), sA))
    e('s_movk_i32 %s, 1792' % sA)
    e('v_mad_u32_u24 %s, %s, %s, %s' % (v(a_w1), v(r_w1), sA, v(a_w1)))
    e('s_movk_i32 %s, 7168' % sStep)
    for t in range(14):
        e('global_load_dwordx4 %s, %s, %s offset:%d%s' % (vr(gW1 + 4 * t, 4), v(a_w1), sW1, 3584 * (t & 1), NT))
        if (t & 1) and t < 13: e('v_add_u32 %s, %s, %s' % (v(a_w1), sStep, v(a_w1)))
    lab('L_Gj1')
    if stamps:
        e('s_mov_b32 s3, 4')
        for k in range(2, len(names)): e('s_mov_b32 s%d, 0' % (ST0 + 2 * k))
    masks(gM, ts, tm)
    e('s_mov_b32 %s, 0xffff0000' % sHi)
    e('v_mov_b32 %s, 0x0c0c0c0c' % v(ts))
    e('s_mov_b32 %s, 0x01000100' % sA); e('s_mov_b32 %s, 0x03020302' % sB)
    for r in range(4):
        e('v_bfi_b32 %s, %s, %s, %s' % (v(gSel + r), v(gM + r), sA, v(ts)))
        e('v_bfi_b32 %s, %s, %s, %s' % (v(gSel + 4 + r), v(gM + r), sB, v(ts)))
    e('v_cmp_gt_u32 %s, 56, v0' % sEx)
    e('v_mov_b32 %s, 0xff' % v(gFF))
    e('v_lshlrev_b32 %s, 4, v0' % v(l_xw))
    e('s_lshr_b32 %s, s2, 6' % sA); e('s_mul_i32 %s, %s, 224' % (sA, sA))
    e('v_mad_u32_u24 %s, v2, 28, %s' % (v(l_xr), sA))
    e('v_mov_b32 %s, %s' % (v(tv), hx(f2u(1.0 / 448))))
    e('s_waitcnt vmcnt(%d)' % (28 + nq))
    if bar0 == 'x': e('s_barrier')
    stamp('x')
    cm('layernorm (two pass), with the bf16 roundings of the reference')
    xs = gA; xd = gA + 8
    for i in range(4):
        e('v_lshlrev_b32 %s, 16, %s' % (v(xs + 2 * i), v(gXs + i)))
        e('v_and_b32 %s, %s, %s' % (v(xs + 2 * i + 1), sHi, v(gXs + i)))
    def red(r, dst):
        R = ['v_add_f32_dpp %s, %s, %s %s %s bound_ctrl:0' % (v(r), v(r), v(r), m, FULL) for m in ['row_shr:1', 'row_shr:2', 'row_shr:4', 'row_shr:8']]
        return R + ['v_add_f32_dpp %s, %s, %s row_bcast:15 row_mask:0xa bank_mask:0xf' % (v(r), v(r), v(r)),
                    'v_add_f32_dpp %s, %s, %s row_bcast:31 row_mask:0xc bank_mask:0xf' % (v(r), v(r), v(r)),
                    'v_readlane_b32 %s, %s, 63' % (dst, v(r))]
    e('v_pk_add_f32 %s, %s, %s' % (vr(xd, 2), vr(xs, 2), vr(xs + 2, 2)))
    e('v_pk_add_f32 %s, %s, %s' % (vr(xd + 2, 2), vr(xs + 4, 2), vr(xs + 6, 2)))
    e('v_pk_add_f32 %s, %s, %s' % (vr(xd, 2), vr(xd, 2), vr(xd + 2, 2)))
    e('v_add_f32 %s, %s, %s' % (v(ts), v(xd), v(xd + 1)))
    e('v_cndmask_b32 %s, 0, %s, %s' % (v(ts), v(ts), sEx))
    for x_ in red(ts, sA): e(x_)
    e('v_mul_f32 %s, %s, %s' % (v(tm), sA, v(tv)))
    for i in range(4): e('v_pk_add_f32 %s, %s, %s %s' % (vr(xd + 2 * i, 2), vr(xs + 2 * i, 2), vr(tm, 2), NEG))
    e('v_pk_mul_f32 %s, %s, %s' % (vr(ts, 2), vr(xd, 2), vr(xd, 2)))
    for i in range(1, 4): e('v_pk_fma_f32 %s, %s, %s, %s' % (vr(ts, 2), vr(xd + 2 * i, 2), vr(xd + 2 * i, 2), vr(ts, 2)))
    e('v_add_f32 %s, %s, %s' % (v(ts), v(ts), v(ts + 1)))
    e('v_cndmask_b32 %s, 0, %s, %s' % (v(ts), v(ts), sEx))
    e('v_cvt_pk_bf16_f32 %s, %s, %s' % (v(tm), v(tm), v(tm)))
    e('v_and_b32 %s, %s, %s' % (v(tm), sHi, v(tm)))
    dops = []
    for i in range(4): dops.append('v_pk_add_f32 %s, %s, %s %s' % (vr(xd + 2 * i, 2), vr(xs + 2 * i, 2), vr(tm, 2), NEG))
    for i in range(4): dops.append('v_cvt_pk_bf16_f32 %s, %s, %s' % (v(xs + i), v(xd + 2 * i), v(xd + 2 * i + 1)))
    for i in range(4):
        dops.append('v_lshlrev_b32 %s, 16, %s' % (v(xd + 2 * i), v(xs + i)))
        dops.append('v_and_b32 %s, %s, %s' % (v(xd + 2 * i + 1), sHi, v(xs + i)))
    for r_ in red(ts, sA):
        e(r_); e(dops.pop(0)); e(dops.pop(0))
    if bar0 == 'var': e('s_barrier')
    e('v_mul_f32 %s, %s, %s' % (v(tv), sA, v(tv)))
    e('v_cvt_pk_bf16_f32 %s, %s, %s' % (v(tv), v(tv), v(tv)))
    e('v_and_b32 %s, %s, %s' % (v(tv), sHi, v(tv)))
    e('v_add_f32 %s, %s, %s' % (v(tv), hx(f2u(1e-5)), v(tv)))
    e('v_cvt_pk_bf16_f32 %s, %s, %s' % (v(tv), v(tv), v(tv)))
    e('v_and_b32 %s, %s, %s' % (v(tv), sHi, v(tv)))
    e('v_sqrt_f32 %s, %s' % (v(tv), v(tv)))
    e(dops.pop(0))
    e('v_cvt_pk_bf16_f32 %s, %s, %s' % (v(tv), v(tv), v(tv)))
    e('v_and_b32 %s, %s, %s' % (v(tv), sHi, v(tv)))
    e('v_rcp_f32 %s, %s' % (v(tv), v(tv)))
    e(dops.pop(0))
    for i in range(4): e('v_pk_mul_f32 %s, %s, %s op_sel_hi:[1,0]' % (vr(xd + 2 * i, 2), vr(xd + 2 * i, 2), vr(tv, 2)))
    for i in range(4): e('v_cvt_pk_bf16_f32 %s, %s, %s' % (v(xs + i), v(xd + 2 * i), v(xd + 2 * i + 1)))
    e('ds_write_b128 %s, %s offset:%d' % (v(l_xw), vr(xs, 4), XN))
    def xnread(a):
        for k in range(3): e('ds_read2_b32 %s, %s offset0:%d offset1:%d' % (vr(gP + 2 * k, 2), v(a), XN // 4 + 2 * k, XN // 4 + 2 * k + 1))
        e('ds_read_b32 %s, %s offset:%d' % (v(gP + 6), v(a), XN + 24))
    xnread(l_xr)
    e('s_waitcnt lgkmcnt(0)')
    if bar0 == 'ln': e('s_barrier')
    def gemv(D, W, young, extra=None):
        cm('vector x matrix: A operand = xn[row] placed on the diagonal, B operand = 8 rows x 64 columns')
        ga = lambda t: gA + 4 * (t % 6)
        def gm(t):
            e('s_waitcnt vmcnt(%d)' % (13 - t + young))
            if extra is not None and bar0 == t: e('s_barrier')
            mfma(D, ga(t), W + 4 * t, t == 0)
        for k in range(7):
            for r in range(4): e('v_perm_b32 %s, %s, %s, %s' % (v(ga(2 * k) + r), v(gP + k), v(gP + k), v(gSel + r)))
            for r in range(4): e('v_perm_b32 %s, %s, %s, %s' % (v(ga(2 * k + 1) + r), v(gP + k), v(gP + k), v(gSel + 4 + r)))
            if k >= 1: gm(2 * k - 2); gm(2 * k - 1)
            if k == 0 and extra: extra()
        gm(12); gm(13)
    gemv(gD, gWq, 14 + nq, tagcalc)
    stamp('wq')
    fixup_tag(gD, gD + 4, [sTq] + sTb[1:], gFF)
    e('global_store_dwordx4 %s, %s, %s' % (v(a_pub), vr(gD, 4), sWs))
    e('ds_write_b128 %s, %s offset:%d' % (v(l_xw), vr(gD, 4), QG))
    e('s_mov_b64 exec, -1')
    e('s_waitcnt lgkmcnt(0)')
    stamp('qpub')
    e('s_barrier')
    e('s_setprio 0')
    e('v_mov_b32 %s, 0' % v(a_h))
    e('s_cmp_eq_u32 %s, 1' % sNU)
    e('s_cbranch_scc0 L_Gtail')
    gE = gWq
    xnread(r_w1)
    e('s_mul_i32 %s, %s, 7168' % (sB, sLC)); e('s_lshl_b32 %s, %s, 8' % (sA, sD)); e('s_add_u32 %s, %s, %s' % (sA, sA, sB)); e('s_add_u32 %s, %s, %d' % (sA, sA, WS_H))
    e('v_lshl_add_u32 %s, v3, 5, %s' % (v(a_h), sA))
    e('v_add_u32 %s, %s, %s' % (v(a_h), v(g16), v(a_h)))
    e('s_waitcnt lgkmcnt(0)')
    gemv(gE, gW1, 1)
    fixup_tag(gE, gE + 4, sTb, gFF)
    e('s_mov_b64 exec, -1')
    stamp('w1')
    e('s_branch L_Gtail')
    lab('L_Gno1')
    e('v_mov_b32 %s, 0' % v(r_w1))
    e('s_mov_b32 %s, 13' % sA)
    lab('L_Gno2')
    e('global_load_dword %s, %s, %s' % (v(gW1), v(r_w1), sX))
    e('s_sub_u32 %s, %s, 1' % (sA, sA))
    e('s_cbranch_scc0 L_Gno2')
    e('s_branch L_Gj1')
    gt0 = len(L)
    lab('L_Gtail')
    ga = [a_wq, a_xs, a_w1, a_pub, l_xw, l_xr]; gd = gXs
    e('s_lshr_b32 %s, %s, 1' % (sLC, sC))
    e('s_bitcmp1_b32 %s, 0' % sC)
    e('s_cbranch_scc0 L_GE')
    cm('odd WG: read the gather lines of slots c-1, c once so that they are valid in L2')
    e('s_lshl_b32 %s, %s, 17' % (sA, sH)); e('s_lshl_b32 %s, %s, 13' % (sB, sLC)); e('s_add_u32 %s, %s, %s' % (sA, sA, sB)); e('s_add_u32 %s, %s, %d' % (sA, sA, WS_O))
    e('v_lshl_add_u32 %s, v0, 7, %s' % (v(ga[0]), sA))
    if prepos == 'M': preread(gd, ga[0], preO)
    if P < 8: e('s_barrier')
    if prepos == 'P': preread(gd, ga[0], preO)
    e('s_barrier')
    if prepos == 'W': preread(gd, ga[0], preO)
    lab('L_Gx')
    e('s_barrier'); e('s_barrier'); e('s_barrier')
    done()
    lab('L_GE')
    cm('even WG: publish h, then reduce four output columns')
    e('s_lshl_b32 %s, %s, 15' % (sA, sH)); e('s_lshl_b32 %s, %s, 11' % (sB, sLC)); e('s_add_u32 %s, %s, %s' % (sA, sA, sB)); e('s_add_u32 %s, %s, %d' % (sA, sA, WS_R))
    e('v_lshl_add_u32 %s, v0, 4, %s' % (v(ga[0]), sA))
    e('v_and_b32 %s, 31, v0' % v(ga[1])); e('v_lshl_add_u32 %s, %s, 4, %s' % (v(ga[1]), v(ga[1]), sA))
    e('v_mad_u32_u24 %s, v0, 24, %s' % (v(ga[4]), sA))
    e('s_min_u32 %s, %s, 6' % (sD, sH)); e('s_lshl_b32 %s, %s, 7' % (sD, sD))
    e('s_lshl3_add_u32 %s, %s, %s' % (sA, sLC, sD))
    e('v_lshrrev_b32 %s, 4, v0' % v(ga[2]))
    e('v_lshl_add_u32 %s, %s, 1, %s' % (v(ga[2]), v(ga[2]), sA))
    e('v_mov_b32 %s, 0' % v(ga[3]))
    e('s_lshr_b32 %s, %s, 2' % (sA, sC)); e('s_mul_i32 %s, %s, 448' % (sA, sA))
    e('v_min_u32 %s, 55, v0' % v(ga[5])); e('v_lshl_add_u32 %s, %s, 3, %s' % (v(ga[5]), v(ga[5]), sA))
    e('s_mov_b32 %s, %d' % (sCnt, spin_cap))
    if P < 8: e('s_barrier')
    e('s_barrier')
    e('s_cmp_eq_u32 %s, 1' % sNU); e('s_cbranch_scc0 L_hs')
    e('s_mov_b64 exec, 0x00ff00ff')
    e('global_store_dwordx4 %s, %s, %s sc1' % (v(a_h), vr(gE, 4), sWs))
    e('s_mov_b64 exec, -1')
    lab('L_hs')
    e('s_cmp_eq_u32 %s, 7' % sH)
    e('s_cbranch_scc1 L_Gx')
    preread(gd, ga[4], preR)
    e('global_load_ushort %s, %s, %s nt' % (v(gd + 1), v(ga[2]), sB2))
    e('global_load_ushort %s, %s, %s' % (v(gd + 2), v(ga[2]), sX))
    if preb1:
        e('s_bitcmp1_b32 %s, 1' % sC); e('s_cbranch_scc0 L_nb1')
        e('global_load_dword %s, %s, %s' % (v(gd), v(ga[5]), sB1))
        lab('L_nb1')
    e('s_barrier')
    e('ds_read_b128 %s, %s offset:%d' % (vr(gD, 4), v(ga[3]), FL))
    e('s_barrier')
    e('s_waitcnt lgkmcnt(0)')
    e('v_or3_b32 %s, %s, %s, %s' % (v(gD), v(gD), v(gD + 1), v(gD + 2)))
    e('v_or_b32 %s, %s, %s' % (v(gD), v(gD), v(gD + 3)))
    e('v_add_u32 %s, %s, %s' % (v(ga[0]), v(gD), v(ga[0])))
    e('v_add_u32 %s, %s, %s' % (v(ga[1]), v(gD), v(ga[1])))
    e('s_barrier')
    e('s_waitcnt vmcnt(0)')
    e('v_lshlrev_b32 %s, 16, %s' % (v(gd + 1), v(gd + 1)))
    e('v_lshlrev_b32 %s, 16, %s' % (v(gd + 2), v(gd + 2)))
    e('v_add_f32 %s, %s, %s' % (v(gd + 1), v(gd + 1), v(gd + 2)))
    e('s_barrier')
    rg_ = gD; tq = ts; RS = [gA + 8 * d for d in range(3)]
    def rsweep(d):
        e('global_load_dwordx4 %s, %s, %s offset:1024 sc1' % (vr(RS[d] + 4, 4), v(ga[1]), sWs))
        e('global_load_dwordx4 %s, %s, %s sc1' % (vr(RS[d], 4), v(ga[0]), sWs))
    for d in range(rdepth - 1): rsweep(d)
    lab('L_rchk')
    for d in range(rdepth):
        rsweep((d + rdepth - 1) % rdepth)
        e('s_waitcnt vmcnt(%d)' % (2 * rdepth - 1))
        for k in range(4, 8): e('v_xor_b32 %s, %s, %s' % (v(rg_ + k), sTb[k & 3], v(RS[d] + k)))
        e('v_or3_b32 %s, %s, %s, %s' % (v(tq), v(rg_ + 4), v(rg_ + 5), v(rg_ + 6)))
        e('s_waitcnt vmcnt(%d)' % (2 * rdepth - 2))
        for k in range(4): e('v_xor_b32 %s, %s, %s' % (v(rg_ + k), sTb[k & 3], v(RS[d] + k)))
        e('v_or3_b32 %s, %s, %s, %s' % (v(tq), v(tq), v(rg_ + 7), v(rg_)))
        e('v_or3_b32 %s, %s, %s, %s' % (v(tq), v(tq), v(rg_ + 1), v(rg_ + 2)))
        e('v_bitop3_b32 %s, %s, %s, %s bitop3:0xa8' % (v(tq), v(tq), v(rg_ + 3), v(gFF)))
        e('v_cmp_ne_u32 vcc, 0, %s' % v(tq))
        e('s_cbranch_vccz L_rok')
    e('s_sub_u32 %s, %s, 1' % (sCnt, sCnt))
    e('s_cbranch_scc0 L_rchk')
    lab('L_rok')
    stamp('rgot')
    cm('lanes 0-31 and 32-63 hold the same 32 FFN partials: each counts one half')
    e('v_pk_fma_f32 %s, %s, 0.5, %s op_sel_hi:[1,0,1]' % (vr(rg_, 2), vr(rg_ + 4, 2), vr(rg_, 2)))
    e('v_pk_fma_f32 %s, %s, 0.5, %s op_sel_hi:[1,0,1]' % (vr(rg_ + 2, 2), vr(rg_ + 6, 2), vr(rg_ + 2, 2)))
    e('v_permlane32_swap_b32 %s, %s' % (v(rg_), v(rg_ + 2)))
    e('v_permlane32_swap_b32 %s, %s' % (v(rg_ + 1), v(rg_ + 3)))
    e('v_pk_add_f32 %s, %s, %s' % (vr(rg_, 2), vr(rg_, 2), vr(rg_ + 2, 2)))
    e('v_permlane16_swap_b32 %s, %s' % (v(rg_), v(rg_ + 1)))
    e('v_add_f32 %s, %s, %s' % (v(rg_), v(rg_), v(rg_ + 1)))
    for m in (1, 2, 4, 8): e('v_add_f32_dpp %s, %s, %s row_ror:%d %s' % (v(rg_), v(rg_), v(rg_), m, FULL))
    e('s_mov_b32 exec_lo, 0x00010001'); e('s_mov_b32 exec_hi, 0x00010001')
    e('v_add_f32 %s, %s, %s' % (v(rg_), v(rg_), v(gd + 1)))
    e('v_cvt_pk_bf16_f32 %s, %s, %s' % (v(rg_), v(rg_), v(rg_)))
    e('global_store_short %s, %s, %s %s' % (v(ga[2]), v(rg_), sOut, outflag))
    e('s_cmp_eq_u32 s2, 0'); e('s_cbranch_scc0 L_fin')
    cm('every WG has read the epoch long ago: advance it')
    e('s_mov_b64 exec, 1')
    e('v_mov_b32 %s, %s' % (v(tq), sT))
    e('global_store_dword %s, %s, %s %s' % (v(ga[3]), v(tq), sWs, outflag))
    done()
    GT = L[gt0:]; del L[gt0:]

    vM = 4; vFF = 8; vB1 = 9
    aK = 10; aV = 14; aQ, aO, aX0, aX1, aX2, aR = 16, 17, 18, 19, 20, 21
    l_qw, l_ml, l_or, l_mr = 22, 23, 24, 25
    l_ow = 26; vZ = 28; t_s, tc, td = 29, 30, 31
    l_qr = 32; vSel = 36; vFl = 40; vAcc = 44
    vKk = 52; vVv = 84; vG = 116; vD = 132; vQB = 140; vA = 156
    vWo = vVv
    NV = 192
    if hops:
        lab('L_hub')
        e('s_cmp_eq_u32 %s, 1' % sSel); e('s_cbranch_scc1 L_A')
        cm('second round: the other windows are in the L2 of this die by now')
        e('s_mov_b32 %s, 1' % sSel)
        e('s_cmp_eq_u32 %s, 1' % sW); e('s_cbranch_scc1 L_pad3')
        e('s_cmp_eq_u32 %s, 3' % sW); e('s_cbranch_scc1 L_pad5')
        e('s_cmp_eq_u32 %s, 4' % sW); e('s_cbranch_scc1 L_pad6')
        e('s_bitcmp1_b32 s2, 3'); e('s_cbranch_scc0 L_pad4'); e('s_branch L_pad1')
    lab('L_A')
    e('s_mov_b64 exec, -1')
    e('s_sub_u32 %s, %s, 1' % (sW, sW))
    e('v_subrev_u32 v0, 64, v0')
    if stamps:
        e('s_mov_b32 s3, %s' % sW)
        for k in range(1, len(names)): e('s_mov_b32 s%d, 0' % (ST0 + 2 * k))
    e('s_waitcnt lgkmcnt(0)')
    e('s_load_dword %s, %s, %d' % (sT, sWs, WS_E))
    cm("K address: base + (16*rr + 4w + g)*512 + eta*64 + s*16 + ((t^x)<<7); i=l&15: g=i>>2, rr=(i>>1)&1, eta=i&1; s=l>>4, x=c&3")
    e('s_lshl_b32 %s, %s, 22' % (sKV, sH))
    e('s_lshl_b32 %s, %s, 15' % (sA, sC))
    e('s_add_u32 %s, %s, %s' % (sKV, sKV, sA))
    e('s_lshl_b32 %s, %s, 11' % (sA, sW))
    e('s_add_u32 %s, %s, %s' % (sKV, sKV, sA))
    e('s_add_u32 %s, %s, 0x300000' % (sKV, sKV))
    e('s_and_b32 %s, %s, 3' % (sB, sC))
    e('s_lshl_b32 %s, %s, 7' % (sB, sB))
    e('s_add_u32 %s, %s, %s' % (sA, sKV, sB))
    e('v_and_b32 %s, 48, v0' % v(t_s))
    e('v_bfe_u32 %s, v0, 2, 2' % v(tc))
    e('v_lshl_add_u32 %s, %s, 9, %s' % (v(aK), v(tc), v(t_s)))
    e('v_and_b32 %s, 2, v0' % v(tc))
    e('v_lshl_add_u32 %s, %s, 12, %s' % (v(aK), v(tc), v(aK)))
    e('v_and_b32 %s, 1, v0' % v(td))
    e('v_lshl_add_u32 %s, %s, 6, %s' % (v(aK), v(td), v(aK)))
    e('v_add_u32 %s, %s, %s' % (v(aK), sA, v(aK)))
    for t in range(1, 4): e('v_xor_b32 %s, 0x%x, %s' % (v(aK + t), t << 7, v(aK)))
    e('s_add_u32 s58, s6, 0x4000'); e('s_addc_u32 s59, s7, 0')
    cm("V address: base + (16r + 4w + s)*512 + ((hf ^ (c&1))<<8) + (l&15)*16")
    e('v_and_b32 %s, 15, v0' % v(tc))
    e('s_and_b32 %s, %s, 1' % (sA, sC)); e('s_lshl_b32 %s, %s, 8' % (sA, sA)); e('s_add_u32 %s, %s, %s' % (sA, sA, sKV))
    e('v_lshlrev_b32 %s, 5, %s' % (v(aV), v(t_s)))
    e('v_lshl_add_u32 %s, %s, 4, %s' % (v(aV), v(tc), v(aV)))
    e('v_add_u32 %s, %s, %s' % (v(aV), sA, v(aV)))
    e('v_xor_b32 %s, 0x100, %s' % (v(aV + 1), v(aV)))
    for r in range(1, 4):
        e('s_add_u32 s%d, s8, 0x%x' % (sPn[r - 1], 0x2000 * r)); e('s_addc_u32 s%d, s9, 0' % (sPn[r - 1] + 1))
    e('v_bfe_u32 v2, v0, 3, 3'); e('v_and_b32 v3, 7, v0')
    cm('partial-o publish: ((h*32 + (t>>3))*32 + c)*128 + (t&7)*16')
    e('s_lshl_b32 %s, %s, 17' % (sD, sH)); e('s_add_u32 %s, %s, %d' % (sD, sD, WS_O))
    e('s_lshl_b32 %s, %s, 7' % (sB, sC)); e('s_add_u32 %s, %s, %s' % (sA, sD, sB))
    e('v_lshrrev_b32 %s, 3, v0' % v(tc))
    e('v_lshl_add_u32 %s, v3, 4, %s' % (v(aO), sA))
    e('v_lshl_add_u32 %s, %s, 12, %s' % (v(aO), v(tc), v(aO)))
    cm('q gather: h*8192 + (l>>5)*4096 + w*512 + (l&31)*16 (+2048)')
    e('s_lshl_b32 %s, %s, 13' % (sA, sH)); e('s_lshl_b32 %s, %s, 9' % (sB, sW)); e('s_add_u32 %s, %s, %s' % (sA, sA, sB))
    e('s_add_u32 %s, %s, %d' % (sA, sA, WS_QF))
    e('v_and_b32 %s, 31, v0' % v(tc))
    e('v_lshl_add_u32 %s, %s, 4, %s' % (v(aQ), v(tc), sA))
    e('v_and_b32 %s, 32, v0' % v(tc))
    e('v_lshl_add_u32 %s, %s, 7, %s' % (v(aQ), v(tc), v(aQ)))
    e('s_lshr_b32 %s, %s, 1' % (sLC, sC))
    e('v_mov_b32 %s, 0' % v(vB1))
    e('s_and_b32 %s, %s, 3' % (sA, sC))
    e('s_cbranch_scc1 L_setN')
    cm('C: aX0 = gather (producer (l>>2)&7 (+8i), pair (l&3)+4*(l>>5)), aX1 = packet publish (granule ((l>>1)&1)+2*(l>>5), copy (l>>2)&7)')
    e('s_add_u32 %s, %s, %s' % (sB, sC, sW))
    e('s_lshl_b32 %s, %s, 12' % (sA, sB)); e('s_add_u32 %s, %s, %s' % (sA, sA, sD))
    e('v_lshl_add_u32 %s, %s, 1, %s' % (v(aX0), v(tc), sA))
    e('v_and_b32 %s, 3, v0' % v(td)); e('v_lshl_add_u32 %s, %s, 4, %s' % (v(aX0), v(td), v(aX0)))
    e('v_and_b32 %s, 28, v0' % v(td)); e('v_lshl_add_u32 %s, %s, 5, %s' % (v(aX0), v(td), v(aX0)))
    e('s_lshl_b32 %s, %s, 11' % (sA, sH))
    e('s_and_b32 %s, %s, 8' % (sD, sB)); e('s_lshl_b32 %s, %s, 7' % (sD, sD)); e('s_add_u32 %s, %s, %s' % (sA, sA, sD))
    e('s_and_b32 %s, %s, 16' % (sD, sB)); e('s_lshl_b32 %s, %s, 5' % (sD, sD)); e('s_add_u32 %s, %s, %s' % (sA, sA, sD))
    e('s_and_b32 %s, %s, 7' % (sD, sB)); e('s_lshl_b32 %s, %s, 6' % (sD, sD)); e('s_add_u32 %s, %s, %s' % (sA, sA, sD))
    e('s_add_u32 %s, %s, %d' % (sA, sA, WS_P))
    e('v_add_u32 %s, %s, %s' % (v(aX1), sA, v(tc)))
    if copies: e('v_lshl_add_u32 %s, %s, 12, %s' % (v(aX1), v(td), v(aX1)))
    e('v_and_b32 %s, 2, v0' % v(tc)); e('v_lshl_add_u32 %s, %s, 3, %s' % (v(aX1), v(tc), v(aX1)))
    e('v_mov_b32 %s, 0' % v(aX2)); e('v_mov_b32 %s, 0' % v(aR))
    e('s_branch L_setJ')
    lab('L_setN')
    e('s_min_u32 %s, %s, 6' % (sD, sH)); e('s_lshl_b32 %s, %s, 7' % (sD, sD))
    e('s_bitcmp1_b32 %s, 0' % sC)
    e('s_cbranch_scc0 L_setF')
    cm("O: aX0/aX1 = wo rows 256*(c>>1) + (w>>1)*128 + ((l>>3) + 8i)*8 + (w&1)*4 + r, aX2 = packet gather")
    e('s_lshl_b32 %s, %s, 8' % (sA, sLC))
    e('s_and_b32 %s, %s, 2' % (sB, sW)); e('s_lshl_b32 %s, %s, 6' % (sB, sB)); e('s_add_u32 %s, %s, %s' % (sA, sA, sB))
    e('s_and_b32 %s, %s, 1' % (sB, sW)); e('s_lshl2_add_u32 %s, %s, %s' % (sA, sB, sA))
    e('s_mul_i32 %s, %s, 896' % (sA, sA)); e('s_add_u32 %s, %s, %s' % (sA, sA, sD))
    e('v_mul_u32_u24 %s, 7168, v2' % v(aX0))
    e('v_lshl_add_u32 %s, v3, 4, %s' % (v(aX0), v(aX0)))
    e('v_add_u32 %s, %s, %s' % (v(aX0), sA, v(aX0)))
    e('v_add_u32 %s, 57344, %s' % (v(aX1), v(aX0)))
    e('s_lshl2_add_u32 %s, %s, %s' % (sB, sLC, sW))
    e('s_lshl_b32 %s, %s, 8' % (sA, sB))
    if copies: e('s_lshl_b32 %s, %s, 14' % (sD, sH)); e('s_add_u32 %s, %s, %s' % (sA, sA, sD))
    e('s_add_u32 %s, %s, %d' % (sA, sA, WS_P))
    e('v_lshl_add_u32 %s, v2, 4, %s' % (v(aX2), sA))
    e('s_branch L_setR')
    lab('L_setF')
    cm("F: aX0/aX1 = w2 rows 224*(c>>2) + 56w + 8*min(l>>3,6) + t, aX2 = h gather (partial l&3, granule (l>>2)&1), vB1 = b1 address")
    e('s_and_b32 %s, %s, -4' % (sB, sC)); e('s_add_u32 %s, %s, %s' % (sB, sB, sW))
    e('s_mul_i32 %s, %s, 56' % (sA, sB))
    e('s_add_u32 %s, %s, 64' % (sB, sB))
    e('v_min_u32 %s, 6, v2' % v(tc))
    e('v_lshl_add_u32 %s, %s, 3, %s' % (v(tc), v(tc), sA))
    e('v_mul_u32_u24 %s, 896, %s' % (v(aX0), v(tc)))
    e('v_lshl_add_u32 %s, v3, 4, %s' % (v(aX0), v(aX0)))
    e('v_add_u32 %s, %s, %s' % (v(aX0), sD, v(aX0)))
    e('v_add_u32 %s, 3584, %s' % (v(aX1), v(aX0)))
    e('v_add_lshl_u32 %s, %s, v3, 1' % (v(vB1), v(tc)))
    e('v_and_b32 %s, 4, v0' % v(td)); e('v_add_lshl_u32 %s, %s, %s, 2' % (v(aX2), v(tc), v(td)))
    e('v_and_b32 %s, 3, v0' % v(td)); e('v_mul_u32_u24 %s, 7168, %s' % (v(td), v(td)))
    e('v_add_u32 %s, %s, %s' % (v(aX2), v(td), v(aX2)))
    e('v_add_u32 %s, %d, %s' % (v(aX2), WS_H, v(aX2)))
    lab('L_setR')
    cm('out-partial publish: h*32768 + ((l&7)*2 + ((l>>4)&1))*2048 + slot*16')
    e('s_lshl_b32 %s, %s, 15' % (sD, sH))
    e('s_lshl4_add_u32 %s, %s, %s' % (sA, sB, sD)); e('s_add_u32 %s, %s, %d' % (sA, sA, WS_R))
    e('v_lshl_add_u32 %s, v3, 12, %s' % (v(aR), sA))
    e('v_and_b32 %s, 16, v0' % v(tc))
    e('v_lshl_add_u32 %s, %s, 7, %s' % (v(aR), v(tc), v(aR)))
    lab('L_setJ')
    masks(vM, tc, td)
    e('v_mov_b32 %s, 0xff' % v(vFF))
    e('s_mov_b32 %s, 0xffff0000' % sHi)
    e('s_mov_b32 %s, %s' % (sCexp, hx(f2u(math.log2(math.e) / 16.0))))
    e('v_mov_b32 %s, 0x0c0c0c0c' % v(tc)); e('s_mov_b32 %s, 0x03020302' % sB)
    for r in range(4): e('v_bfi_b32 %s, %s, %s, %s' % (v(vSel + r), v(vM + r), sB, v(tc)))
    e('v_mov_b32 %s, 0' % v(vZ))
    seq = []
    fill = []
    def f(s): fill.append(s)
    def gap(n=2):
        for _ in range(n):
            if fill: e(fill.pop(0))
    def kload(i):
        o, t = i >> 2, i & 3
        e('global_load_dwordx4 %s, %s, %s%s' % (vr(vKk + 16 * o + 4 * t, 4), v(aK + t), sK if o == 0 else sPK, NT)); seq.append('k%d' % i); gap()
    def vload(i):
        r, hf = i >> 1, i & 1
        e('global_load_dwordx4 %s, %s, %s%s' % (vr(vVv + 8 * r + 4 * hf, 4), v(aV + hf), sV if r == 0 else sP[r - 1], NT)); seq.append('v%d' % i); gap()
    def qpoll(dst):
        e('global_load_dwordx4 %s, %s, %s sc1' % (vr(dst, 4), v(aQ), sWs))
        e('global_load_dwordx4 %s, %s, %s offset:2048 sc1' % (vr(dst + 4, 4), v(aQ), sWs))
    def waitfor(name, sq=None):
        sq = seq if sq is None else sq
        e('s_waitcnt vmcnt(%d)' % (len(sq) - 1 - sq.index(name)))
    f('s_lshl_b32 %s, %s, 8' % (sA, sW))
    f('v_lshl_add_u32 %s, v3, 4, %s' % (v(l_qw), sA))
    f('v_and_b32 %s, 8, v0' % v(tc)); f('v_add_u32 %s, %s, %s' % (v(l_qw), v(l_qw), v(tc)))
    f('v_and_b32 %s, 16, v0' % v(td)); f('v_lshl_add_u32 %s, %s, 3, %s' % (v(l_qw), v(td), v(l_qw)))
    f('v_bfe_u32 %s, v0, 5, 1' % v(td)); f('v_lshl_add_u32 %s, %s, 2, %s' % (v(l_qw), v(td), v(l_qw)))
    f('s_and_b32 %s, %s, 2' % (sA, sW)); f('s_lshl_b32 %s, %s, 6' % (sA, sA))
    f('v_xor_b32 %s, %s, %s' % (v(l_qw), sA, v(l_qw)))
    f('v_mul_u32_u24 %s, %d, %s' % (v(l_qr), (512 + 128) // 8, v(tc)))
    f('v_and_b32 %s, 1, v0' % v(td)); f('v_lshl_add_u32 %s, %s, 6, %s' % (v(l_qr), v(td), v(l_qr)))
    f('v_add_u32 %s, %s, %s' % (v(l_qr), v(l_qr), v(t_s)))
    f('s_and_b32 %s, %s, 3' % (sA, sC)); f('s_lshl_b32 %s, %s, 7' % (sA, sA))
    f('v_xor_b32 %s, %s, %s' % (v(l_qr), sA, v(l_qr)))
    for t in range(1, 4): f('v_xor_b32 %s, 0x%x, %s' % (v(l_qr + t), t << 7, v(l_qr)))
    f('s_lshl_b32 %s, %s, 2' % (sA, sW))
    f('v_lshl_add_u32 %s, %s, 2, %s' % (v(l_ml), v(tc), sA))
    f('s_lshl_b32 %s, %s, 1' % (sA, sW)); f('s_and_b32 %s, %s, 1' % (sB, sC)); f('s_add_u32 %s, %s, %s' % (sA, sA, sB)); f('s_lshl_b32 %s, %s, 10' % (sA, sA))
    f('v_and_b32 %s, 63, v0' % v(td))
    f('v_lshl_add_u32 %s, %s, 4, %s' % (v(l_ow), v(td), sA))
    f('v_xor_b32 %s, 0x400, %s' % (v(l_ow + 1), v(l_ow)))
    f('v_lshlrev_b32 %s, 3, v0' % v(l_or))
    f('s_and_b32 %s, %s, 1' % (sA, sW)); f('s_lshl_b32 %s, %s, 5' % (sA, sA))
    f('v_mov_b32 %s, %s' % (v(l_mr), sA))
    f('s_mov_b32 %s, %d' % (sCnt, spin_cap))
    f('v_mov_b32 %s, 0' % v(vFl))
    e('s_barrier')
    cm('the number of K loads in front of the q publish depends on what G has already queued')
    for i in range(kE): kload(i)
    e('s_bitcmp1_b32 %s, 0' % sC); e('s_cbranch_scc1 L_k1')
    e('s_barrier')
    lab('L_k1')
    for i in range(kE, kO): kload(i)
    stamp('Kiss')
    e('s_bitcmp1_b32 %s, 0' % sC); e('s_cbranch_scc0 L_k2')
    e('s_barrier')
    lab('L_k2')
    for i in range(kO, 8): kload(i)
    for i in range(P): vload(i)
    if P < 8: e('s_barrier')
    qpoll(vG); seq += ['q0', 'q1']; gap()
    for i in range(P, 8): vload(i)
    qpoll(vG + 8); seq += ['r0', 'r1']
    e('s_barrier')
    stamp('Viss')
    gap(100)
    e('s_waitcnt lgkmcnt(0)')
    tagcalc()
    waitfor('q1')
    stamp('qarr')
    lab('L_qchk')
    for k in range(8): e('v_xor_b32 %s, %s, %s' % (v(vG + k), sTq if (k & 3) == 0 else sTb[k & 3], v(vG + k)))
    e('v_or3_b32 %s, %s, %s, %s' % (v(tc), v(vG + 1), v(vG + 2), v(vG + 3)))
    e('v_or3_b32 %s, %s, %s, %s' % (v(tc), v(tc), v(vG + 5), v(vG + 6)))
    e('v_or3_b32 %s, %s, %s, %s' % (v(td), v(vG), v(vG + 4), v(vG + 7)))
    e('v_bitop3_b32 %s, %s, %s, %s bitop3:0xa8' % (v(td), v(tc), v(td), v(vFF)))
    e('v_cmp_ne_u32 vcc, 0, %s' % v(td))
    e('s_cbranch_vccnz L_qslow')
    lab('L_qok')
    e('v_pk_add_f32 %s, %s, %s' % (vr(vG, 2), vr(vG, 2), vr(vG + 4, 2)))
    e('v_pk_add_f32 %s, %s, %s' % (vr(vG + 2, 2), vr(vG + 2, 2), vr(vG + 6, 2)))
    e('ds_write_b32 %s, %s offset:%d' % (v(l_ml), v(vFl), FL))
    e('v_permlane32_swap_b32 %s, %s' % (v(vG), v(vG + 2)))
    e('v_permlane32_swap_b32 %s, %s' % (v(vG + 1), v(vG + 3)))
    e('v_pk_add_f32 %s, %s, %s' % (vr(vG, 2), vr(vG, 2), vr(vG + 2, 2)))
    e('v_cvt_pk_bf16_f32 %s, %s, %s' % (v(vG), v(vG), v(vG + 1)))
    e('ds_write_b32 %s, %s offset:%d' % (v(l_qw), v(vG), QB))
    e('s_waitcnt lgkmcnt(0)')
    e('s_barrier')
    for t in range(4): e('ds_read_b128 %s, %s offset:%d' % (vr(vQB + 4 * t, 4), v(l_qr + t), QB))
    e('ds_read_b128 %s, %s offset:%d' % (vr(vFl, 4), v(vZ), FL))
    cm('scores: rows (key, 64-byte half), columns (head, half); the matching halves are added below')
    for t in range(4):
        e('s_waitcnt lgkmcnt(%d)' % (4 - t))
        for o in range(2): mfma(vD + 4 * o, vKk + 16 * o + 4 * t, vQB + 4 * t, t == 0)
    e('s_waitcnt lgkmcnt(0)')
    e('v_or3_b32 %s, %s, %s, %s' % (v(vFl), v(vFl), v(vFl + 1), v(vFl + 2)))
    e('v_or_b32 %s, %s, %s' % (v(vFl), v(vFl), v(vFl + 3)))
    e('v_add_u32 %s, %s, %s' % (v(aO), v(aO), v(vFl)))
    e('v_add_u32 %s, %s, %s' % (v(aR), v(aR), v(vFl)))
    e('v_readfirstlane_b32 %s, %s' % (sNU, v(vFl)))
    sc = vG; m0, m1 = vG + 4, vG + 5
    for r in range(4): e('v_mov_b32_dpp %s, %s quad_perm:[1,1,3,3] %s' % (v(sc + r), v(vD + 2 * r + 1), FULL))
    for r in range(4): e('v_add_f32_dpp %s, %s, %s quad_perm:[0,0,2,2] %s' % (v(sc + r), v(vD + 2 * r), v(sc + r), FULL))
    e('v_cvt_pk_bf16_f32 %s, %s, %s' % (v(sc + 1), v(sc), v(sc + 1)))
    e('v_cvt_pk_bf16_f32 %s, %s, %s' % (v(sc + 3), v(sc + 2), v(sc + 3)))
    e('v_lshlrev_b32 %s, 16, %s' % (v(sc), v(sc + 1)))
    e('v_and_b32 %s, %s, %s' % (v(sc + 1), sHi, v(sc + 1)))
    e('v_lshlrev_b32 %s, 16, %s' % (v(sc + 2), v(sc + 3)))
    e('v_and_b32 %s, %s, %s' % (v(sc + 3), sHi, v(sc + 3)))
    cm('softmax over the 16 keys of this wave with their true maximum')
    e('v_max3_f32 %s, %s, %s, %s' % (v(m0), v(sc), v(sc + 1), v(sc + 2)))
    e('v_max_f32 %s, %s, %s' % (v(m1), v(m0), v(sc + 3)))
    e('v_max_f32 %s, %s, %s' % (v(m0), v(m0), v(sc + 3)))
    e('v_permlane32_swap_b32 %s, %s' % (v(m0), v(m1)))
    e('v_max_f32 %s, %s, %s' % (v(tc), v(m0), v(m1)))
    e('v_max_f32 %s, %s, %s' % (v(m1), v(m0), v(m1)))
    e('v_permlane16_swap_b32 %s, %s' % (v(tc), v(m1)))
    e('v_max_f32 %s, %s, %s' % (v(m0), v(tc), v(m1)))
    e('v_mul_f32 %s, %s, %s' % (v(m0), sCexp, v(m0)))
    for r in range(4): e('v_fma_f32 %s, %s, %s, -%s' % (v(sc + r), v(sc + r), sCexp, v(m0)))
    for r in range(4): e('v_exp_f32 %s, %s' % (v(sc + r), v(sc + r)))
    ls, l2, pk = vG + 5, vG + 6, vG + 7
    def ab(r):
        e('v_cvt_pk_bf16_f32 %s, %s, %s' % (v(pk), v(sc + r), v(sc + r)))
        for k in range(4): e('v_and_b32 %s, %s, %s' % (v(vA + 4 * r + k), v(pk), v(vM + k)))
    def pv(r):
        for hf in range(2):
            if 2 * r + hf >= P: waitfor('v%d' % (2 * r + hf))
            mfma(vD + 4 * hf, vA + 4 * r, vVv + 8 * r + 4 * hf, r == 0)
    e('v_add_f32 %s, %s, %s' % (v(ls), v(sc), v(sc + 1)))
    e('v_add_f32 %s, %s, %s' % (v(tc), v(sc + 2), v(sc + 3)))
    e('v_add_f32 %s, %s, %s' % (v(l2), v(ls), v(tc)))
    e('v_add_f32 %s, %s, %s' % (v(ls), v(ls), v(tc)))
    ab(0)
    e('v_permlane32_swap_b32 %s, %s' % (v(ls), v(l2)))
    e('v_add_f32 %s, %s, %s' % (v(tc), v(ls), v(l2)))
    e('v_add_f32 %s, %s, %s' % (v(l2), v(ls), v(l2)))
    npre = min(3, P // 2)
    if npre >= 1: pv(0)
    e('v_permlane16_swap_b32 %s, %s' % (v(tc), v(l2)))
    e('v_add_f32 %s, %s, %s' % (v(ls), v(tc), v(l2)))
    e('ds_write_b32 %s, %s offset:%d' % (v(l_ml), v(m0), ML))
    e('ds_write_b32 %s, %s offset:%d' % (v(l_ml), v(ls), ML + 16))
    ab(1)
    ab(2)
    if npre >= 2: pv(1)
    e('s_waitcnt lgkmcnt(0)')
    e('s_barrier')
    mm, ll, oo = vQB, vQB + 4, vQB + 8
    e('ds_read_b128 %s, %s offset:%d' % (vr(mm, 4), v(l_mr), ML))
    e('ds_read_b128 %s, %s offset:%d' % (vr(ll, 4), v(l_mr), ML + 16))
    ab(3)
    if npre >= 3: pv(2)
    pb = vG; mx = vG + 4; lt = vG + 5; rr = vG + 6
    e('v_mov_b32 %s, %s' % (v(pb + 3), sT))
    e('s_waitcnt lgkmcnt(1)')
    e('v_max3_f32 %s, %s, %s, %s' % (v(mx), v(mm), v(mm + 1), v(mm + 2)))
    e('v_max_f32 %s, %s, %s' % (v(mx), v(mx), v(mm + 3)))
    for k in range(2): e('v_pk_add_f32 %s, %s, %s %s' % (vr(mm + 2 * k, 2), vr(mm + 2 * k, 2), vr(mx, 2), NEG))
    for k in range(4): e('v_exp_f32 %s, %s' % (v(mm + k), v(mm + k)))
    e('s_waitcnt lgkmcnt(0)')
    e('v_mul_f32 %s, %s, %s' % (v(lt), v(mm), v(ll)))
    for k in range(1, 4): e('v_fmac_f32 %s, %s, %s' % (v(lt), v(mm + k), v(ll + k)))
    e('v_rcp_f32 %s, %s' % (v(rr), v(lt)))
    e('v_log_f32 %s, %s' % (v(lt), v(lt)))
    e('s_cmp_eq_u32 %s, 0' % sNU)
    stamp('smax')
    for r in range(npre, 4): pv(r)
    stamp('Varr')
    for k in range(2): e('v_pk_mul_f32 %s, %s, %s op_sel_hi:[1,0]' % (vr(mm + 2 * k, 2), vr(mm + 2 * k, 2), vr(rr, 2)))
    e('v_add_f32 %s, %s, %s' % (v(pb + 2), v(mx), v(lt)))
    e('v_mov_b32 %s, %s' % (v(td), sT))
    e('s_mov_b32 %s, 0x05040100' % sA); e('s_mov_b32 %s, 0x07060302' % sB)
    e('s_mov_b32 %s, %d' % (sCnt, spin_cap))
    e('ds_write_b128 %s, %s offset:%d' % (v(l_ow), vr(vD, 4), OL))
    e('ds_write_b128 %s, %s offset:%d' % (v(l_ow + 1), vr(vD + 4, 4), OL))
    e('s_waitcnt lgkmcnt(0)')
    e('s_barrier')
    for k in range(4): e('ds_read_b64 %s, %s offset:%d' % (vr(oo + 2 * k, 2), v(l_or), OL + 2048 * k))
    e('s_waitcnt lgkmcnt(3)')
    e('v_pk_mul_f32 %s, %s, %s op_sel_hi:[1,0]' % (vr(pb, 2), vr(oo, 2), vr(mm, 2)))
    e('s_waitcnt lgkmcnt(2)')
    e('v_pk_fma_f32 %s, %s, %s, %s op_sel:[0,1,0] op_sel_hi:[1,1,1]' % (vr(pb, 2), vr(oo + 2, 2), vr(mm, 2), vr(pb, 2)))
    e('s_waitcnt lgkmcnt(1)')
    e('v_pk_fma_f32 %s, %s, %s, %s op_sel_hi:[1,0,1]' % (vr(pb, 2), vr(oo + 4, 2), vr(mm + 2, 2), vr(pb, 2)))
    e('s_waitcnt lgkmcnt(0)')
    e('v_pk_fma_f32 %s, %s, %s, %s op_sel:[0,1,0] op_sel_hi:[1,1,1]' % (vr(pb, 2), vr(oo + 6, 2), vr(mm + 2, 2), vr(pb, 2)))
    e('s_cbranch_scc0 L_oslow')
    cm('publish {o0, o1, log2-sum-exp, T}; all 32 WGs of the group sit on one die (checked with q), so L2 is the meeting point')
    e('global_store_dwordx4 %s, %s, %s' % (v(aO), vr(pb, 4), sWs))
    lab('L_opub')
    stamp('opub')
    e('s_and_b32 %s, %s, 3' % (sD, sC))
    e('s_cbranch_scc1 L_N')
    gg = vKk
    e('v_add_u32 %s, %s, %s' % (v(aX0), sNU, v(aX0)))
    mx = vA; s0 = vA + 1; n0 = vA + 2; n1_ = vA + 3
    lab('L_ochk')
    for i in range(4): e('global_load_dwordx4 %s, %s, %s offset:%d sc1' % (vr(gg + 4 * i, 4), v(aX0), sWs, 1024 * i))
    e('s_sub_u32 %s, %s, 1' % (sCnt, sCnt))
    e('s_waitcnt vmcnt(0)')
    e('s_cbranch_scc1 L_ook')
    e('v_bitop3_b32 %s, %s, %s, %s bitop3:0x7e' % (v(tc), v(gg + 3), v(gg + 7), v(td)))
    e('v_bitop3_b32 %s, %s, %s, %s bitop3:0x7e' % (v(s0), v(gg + 11), v(gg + 15), v(td)))
    e('v_max3_f32 %s, %s, %s, %s' % (v(mx), v(gg + 2), v(gg + 6), v(gg + 10)))
    e('v_or_b32 %s, %s, %s' % (v(tc), v(tc), v(s0)))
    e('v_max_f32 %s, %s, %s' % (v(mx), v(mx), v(gg + 14)))
    e('v_cmp_ne_u32 vcc, 0, %s' % v(tc))
    e('s_cbranch_vccnz L_ochk')
    lab('L_ook')
    stamp('ogath')
    cm('combine the 32 key chunks')
    e('v_max_f32_dpp %s, %s, %s row_ror:4 %s' % (v(mx), v(mx), v(mx), FULL))
    e('v_max_f32_dpp %s, %s, %s row_ror:8 %s' % (v(s0), v(mx), v(mx), FULL))
    e('v_max_f32_dpp %s, %s, %s row_ror:8 %s' % (v(mx), v(mx), v(mx), FULL))
    e('v_permlane16_swap_b32 %s, %s' % (v(mx), v(s0)))
    e('v_max_f32 %s, %s, %s' % (v(mx), v(mx), v(s0)))
    for i in range(4): e('v_sub_f32 %s, %s, %s' % (v(gg + 4 * i + 2), v(gg + 4 * i + 2), v(mx)))
    for i in range(4): e('v_exp_f32 %s, %s' % (v(gg + 4 * i + 2), v(gg + 4 * i + 2)))
    e('v_add_f32 %s, %s, %s' % (v(s0), v(gg + 2), v(gg + 6)))
    e('v_pk_mul_f32 %s, %s, %s op_sel_hi:[1,0]' % (vr(n0, 2), vr(gg, 2), vr(gg + 2, 2)))
    e('v_add_f32 %s, %s, %s' % (v(s0), v(s0), v(gg + 10)))
    e('v_pk_fma_f32 %s, %s, %s, %s op_sel_hi:[1,0,1]' % (vr(n0, 2), vr(gg + 4, 2), vr(gg + 6, 2), vr(n0, 2)))
    e('v_add_f32 %s, %s, %s' % (v(s0), v(s0), v(gg + 14)))
    e('v_pk_fma_f32 %s, %s, %s, %s op_sel_hi:[1,0,1]' % (vr(n0, 2), vr(gg + 8, 2), vr(gg + 10, 2), vr(n0, 2)))
    e('v_pk_fma_f32 %s, %s, %s, %s op_sel_hi:[1,0,1]' % (vr(n0, 2), vr(gg + 12, 2), vr(gg + 14, 2), vr(n0, 2)))
    for r in (s0, n0, n1_): e('v_add_f32_dpp %s, %s, %s row_ror:4 %s' % (v(r), v(r), v(r), FULL))
    for r in (s0, n0, n1_):
        e('v_add_f32_dpp %s, %s, %s row_ror:8 %s' % (v(r + 4), v(r), v(r), FULL))
        e('v_add_f32_dpp %s, %s, %s row_ror:8 %s' % (v(r), v(r), v(r), FULL))
    for r in (s0, n0, n1_): e('v_permlane16_swap_b32 %s, %s' % (v(r), v(r + 4)))
    e('v_add_f32 %s, %s, %s' % (v(s0), v(s0), v(s0 + 4)))
    e('v_pk_add_f32 %s, %s, %s' % (vr(n0, 2), vr(n0, 2), vr(n0 + 4, 2)))
    e('v_rcp_f32 %s, %s' % (v(mx), v(s0)))
    e('v_pk_mul_f32 %s, %s, %s op_sel_hi:[1,0]' % (vr(n0, 2), vr(n0, 2), vr(mx, 2)))
    e('v_cvt_pk_bf16_f32 %s, %s, %s' % (v(n0), v(n0), v(n1_)))
    pp = vA + 8
    e('v_perm_b32 %s, %s, %s, %s' % (v(pp), v(n0), v(td), sA))
    e('v_perm_b32 %s, %s, %s, %s' % (v(pp + 1), v(n0), v(td), sB))
    e('v_mov_b32_dpp %s, %s quad_perm:[1,1,3,3] %s' % (v(pp + 2), v(pp), FULL))
    e('v_mov_b32_dpp %s, %s quad_perm:[1,1,3,3] %s' % (v(pp + 3), v(pp + 1), FULL))
    mk = '0x05555555' if copies else '5'
    e('s_mov_b32 exec_lo, %s' % mk); e('s_mov_b32 exec_hi, %s' % mk)
    e('global_store_dwordx4 %s, %s, %s sc1' % (v(aX1), vr(pp, 4), sWs))
    stamp('ppub')
    e('s_cmp_eq_u32 %s, 7' % sH); e('s_cbranch_scc1 L_fin')
    e('s_barrier')
    done()
    L.extend(GT)
    lab('L_N')
    e('s_cmp_eq_u32 %s, 7' % sH); e('s_cbranch_scc1 L_fin')
    e('s_cmp_eq_u32 %s, 2' % sD); e('s_cbranch_scc1 L_F')
    def wload(t, base):
        e('global_load_dwordx4 %s, %s, %s offset:%d%s' % (vr(vWo + 4 * t, 4), v(aX0 + (t >> 2)), base, 896 * (t & 3), NT))
    pg = vKk; z = vG + 4
    def ppoll():
        for i in range(2): e('global_load_dwordx4 %s, %s, %s offset:%d sc1' % (vr(pg + 4 * i, 4), v(aX2), sWs, 128 * i))
    for t in range(8):
        wload(t, sWo)
        if t < 7: e('v_mov_b32 %s, 0' % v(vAcc + t)); e('s_cmp_eq_u32 %s, 0' % sNU)
    e('s_cselect_b32 %s, 1, 0' % sD)
    e('s_waitcnt vmcnt(%d)' % pgate)
    if stamps: ppoll(); e('s_waitcnt vmcnt(2)'); stamp('wgot'); e('s_branch L_pchk0')
    lab('L_pchk')
    ppoll()
    lab('L_pchk0')
    e('s_sub_u32 %s, %s, 1' % (sCnt, sCnt))
    e('s_waitcnt vmcnt(0)')
    e('s_cbranch_scc1 L_pok')
    for k in range(4): e('v_perm_b32 %s, %s, %s, %s' % (v(z + k), v(pg + 2 * k + 1), v(pg + 2 * k), sA))
    e('v_bitop3_b32 %s, %s, %s, %s bitop3:0x7e' % (v(z), v(z), v(z + 1), v(td)))
    e('v_bitop3_b32 %s, %s, %s, %s bitop3:0x7e' % (v(z + 2), v(z + 2), v(z + 3), v(td)))
    e('v_or_b32 %s, %s, %s' % (v(z), v(z), v(z + 2)))
    e('v_cmp_ne_u32 vcc, 0, %s' % v(z))
    e('s_cbranch_vccnz L_pchk')
    lab('L_pok')
    stamp('pgot')
    for t in range(8):
        for k in range(4): e('v_perm_b32 %s, %s, %s, %s' % (v(vA + 4 * (t & 3) + k), v(pg + t), v(pg + t), v(vSel + k)))
        if t > 0: mfma(vAcc, vA + 4 * ((t - 1) & 3), vWo + 4 * (t - 1), t == 1)
    lab('L_last1')
    e('s_cmp_eq_u32 %s, 1' % sD)
    mfma(vAcc, vA + 12, vWo + 28, False)
    fixup_tag(vAcc, vAcc + 4, sTb, vFF)
    e('s_cbranch_scc0 L_rslow')
    e('global_store_dwordx4 %s, %s, %s' % (v(aR), vr(vAcc, 4), sWs))
    lab('L_rpub')
    stamp('rpub')
    e('s_bitcmp1_b32 %s, 0' % sC); e('s_cbranch_scc1 L_fin')
    e('s_barrier')
    done()
    lab('L_F')
    hg = vKk
    sq = [('w', t) for t in range(8)]; sq = sq[:hidx] + ['h', 'b1'] + sq[hidx:]
    fl = ['v_and_b32 %s, 1, v0' % v(tc), 'v_cmp_eq_u32 %s, 1, %s' % (sM1, v(tc)), 'v_and_b32 %s, 2, v0' % v(tc), 'v_cmp_eq_u32 %s, 2, %s' % (sM2, v(tc)),
          'v_cmp_gt_u32 %s, 7, v2' % sEx, 's_cmp_eq_u32 %s, 0' % sNU, 's_cselect_b32 %s, 1, 0' % sD] + ['v_mov_b32 %s, 0' % v(vAcc + k) for k in range(7)]
    for x_ in sq:
        if x_ == 'h': e('global_load_dwordx4 %s, %s, %s sc1' % (vr(hg, 4), v(aX2), sWs))
        elif x_ == 'b1': e('global_load_ushort %s, %s, %s' % (v(vB1), v(vB1), sB1))
        else:
            wload(x_[1], sW2)
            for _ in range(2):
                if fl: e(fl.pop(0))
    waitfor('b1', sq)
    lab('L_hchk')
    for k in range(4): e('v_xor_b32 %s, %s, %s' % (v(hg + k), sTb[k], v(hg + k)))
    e('v_or3_b32 %s, %s, %s, %s' % (v(tc), v(hg), v(hg + 1), v(hg + 2)))
    e('v_bitop3_b32 %s, %s, %s, %s bitop3:0xa8' % (v(tc), v(tc), v(hg + 3), v(vFF)))
    e('v_cmp_ne_u32 vcc, 0, %s' % v(tc))
    e('s_cbranch_vccnz L_hretry')
    lab('L_hok')
    stamp('pgot')
    for m in ['quad_perm:[1,0,3,2]', 'quad_perm:[2,3,0,1]']:
        for k in range(4): e('v_add_f32_dpp %s, %s, %s %s %s' % (v(hg + k), v(hg + k), v(hg + k), m, FULL))
    hv, h2, h3 = hg, hg + 1, hg + 2
    e('v_cndmask_b32 %s, %s, %s, %s' % (v(hg), v(hg), v(hg + 1), sM1))
    e('v_cndmask_b32 %s, %s, %s, %s' % (v(hg + 2), v(hg + 2), v(hg + 3), sM1))
    e('v_lshlrev_b32 %s, 16, %s' % (v(vB1), v(vB1)))
    e('v_cndmask_b32 %s, %s, %s, %s' % (v(hv), v(hg), v(hg + 2), sM2))
    e('v_cvt_pk_bf16_f32 %s, %s, %s' % (v(hv), v(hv), v(hv)))
    e('v_and_b32 %s, %s, %s' % (v(hv), sHi, v(hv)))
    e('v_add_f32 %s, %s, %s' % (v(hv), v(hv), v(vB1)))
    e('v_cvt_pk_bf16_f32 %s, %s, %s' % (v(hv), v(hv), v(hv)))
    e('v_and_b32 %s, %s, %s' % (v(hv), sHi, v(hv)))
    cm('gelu(tanh form) = x / (1 + exp(-2*sqrt(2/pi)*(x + 0.044715 x^3)))')
    k1 = -2.0 * math.log2(math.e) * math.sqrt(2.0 / math.pi)
    e('v_mul_f32 %s, %s, %s' % (v(h2), v(hv), v(hv)))
    e('v_mov_b32 %s, %s' % (v(h3), hx(f2u(k1))))
    e('v_fmac_f32 %s, %s, %s' % (v(h3), hx(f2u(k1 * 0.044715)), v(h2)))
    e('v_mul_f32 %s, %s, %s' % (v(h3), v(h3), v(hv)))
    e('v_exp_f32 %s, %s' % (v(h3), v(h3)))
    e('v_add_f32 %s, 1.0, %s' % (v(h3), v(h3)))
    e('v_rcp_f32 %s, %s' % (v(h3), v(h3)))
    e('v_mul_f32 %s, %s, %s' % (v(hv), v(hv), v(h3)))
    e('v_cvt_pk_bf16_f32 %s, %s, %s' % (v(hv), v(hv), v(hv)))
    e('v_cndmask_b32 %s, 0, %s, %s' % (v(h2), v(hv), sEx))
    e('v_cndmask_b32 %s, 0, %s, %s' % (v(h3), v(hv), sEx))
    e('v_cndmask_b32 %s, 0, %s, %s' % (v(hv), v(hv), sEx))
    e('v_mov_b32_dpp %s, %s row_shr:4 row_mask:0xf bank_mask:0xa' % (v(h2), v(hv)))
    e('v_mov_b32_dpp %s, %s row_shl:4 row_mask:0xf bank_mask:0x5' % (v(h3), v(hv)))
    for t in range(8):
        q_ = t & 3
        for k in range(4): e('v_and_b32_dpp %s, %s, %s quad_perm:[%d,%d,%d,%d] %s' % (v(vA + 4 * q_ + k), v(h2 if t < 4 else h3), v(vM + k), q_, q_, q_, q_, FULL))
        if t > 0:
            if t - 1 >= hidx: waitfor(('w', t - 1), sq)
            mfma(vAcc, vA + 4 * ((t - 1) & 3), vWo + 4 * (t - 1), t == 1)
    e('s_waitcnt vmcnt(0)')
    stamp('wgot')
    e('s_branch L_last1')
    lab('L_fin')
    if stamps:
        e('s_mov_b64 exec, -1')
        e('s_waitcnt vmcnt(0)')
        stamp('end', True)
        e('s_mov_b32 %s, 20000' % sCnt)
        lab('L_sd')
        e('s_memrealtime s[52:53]'); e('s_waitcnt lgkmcnt(0)'); e('s_sub_u32 s52, s52, s%d' % ST0)
        e('s_sub_u32 %s, %s, 1' % (sCnt, sCnt)); e('s_cbranch_scc1 L_sd2')
        e('s_cmp_lt_u32 s52, 1200'); e('s_cbranch_scc1 L_sd')
        lab('L_sd2')
        e('s_mov_b64 exec, 1')
        e('s_mul_i32 %s, s2, 5' % sA); e('s_add_u32 %s, %s, s3' % (sA, sA)); e('s_lshl_b32 %s, %s, 6' % (sA, sA))
        e('s_add_u32 %s, %s, %d' % (sA, sA, WS_T))
        e('v_mov_b32 v6, %s' % sA)
        for k in range(len(names)): e('v_mov_b32 v%d, s%d' % (8 + k, ST0 + 2 * k))
        e('s_getreg_b32 %s, hwreg(HW_REG_XCC_ID)' % sA)
        e('v_mov_b32 v22, %s' % sA); e('v_mov_b32 v23, s3')
        for k in range(4): e('global_store_dwordx4 v6, v[%d:%d], %s offset:%d%s' % (8 + 4 * k, 11 + 4 * k, sWs, 16 * k, ' sc1' if diag else ''))
        if diag:
            import diaglib
            diaglib.emit(e, lab, diag, names, gnames, ST0, WS_T, sWs)
    lab('L_end')
    e('s_endpgm')
    def pubS():
        cm("device-scope copy of this WG's q granules")
        e('s_lshl_b32 %s, %s, 13' % (sA, sH)); e('s_lshl_b32 %s, %s, 8' % (sB, sC)); e('s_add_u32 %s, %s, %s' % (sA, sA, sB))
        e('s_add_u32 %s, %s, %d' % (sA, sA, WS_QF + QS_X))
        e('v_and_b32 %s, 31, v0' % v(tc)); e('v_lshlrev_b32 %s, 4, %s' % (v(tc), v(tc)))
        e('ds_read_b128 %s, %s offset:%d' % (vr(vQB, 4), v(tc), QG))
        e('v_lshl_add_u32 %s, v3, 4, %s' % (v(tc), sA))
        e('v_and_b32 %s, 16, v0' % v(td)); e('v_lshl_add_u32 %s, %s, 3, %s' % (v(tc), v(td), v(tc)))
        e('s_mov_b64 exec, 0x00ff00ff')
        e('s_waitcnt lgkmcnt(0)')
        e('global_store_dwordx4 %s, %s, %s sc1' % (v(tc), vr(vQB, 4), sWs))
        e('s_mov_b64 exec, -1')
    lab('L_qslow')
    e('v_or_b32 %s, %s, %s' % (v(td), v(vG), v(vG + 4)))
    e('v_and_b32 %s, 0xf0, %s' % (v(td), v(td)))
    e('v_or3_b32 %s, %s, %s, %s' % (v(td), v(tc), v(vG + 7), v(td)))
    e('v_and_b32 %s, %s, %s' % (v(td), v(vFF), v(td)))
    e('v_cmp_ne_u32 vcc, 0, %s' % v(td))
    e('s_cbranch_vccnz L_qretry')
    cm('valid, but some producer sits on another die: the whole group switches to device-scope hand-offs')
    e('v_mov_b32 %s, 0x%x' % (v(vFl), OS_SLOW))
    e('v_and_b32 %s, -16, %s' % (v(vG), v(vG)))
    e('v_and_b32 %s, -16, %s' % (v(vG + 4), v(vG + 4)))
    pubS()
    e('s_branch L_qok')
    lab('L_qretry')
    stamp('qfail', True)
    e('s_sub_u32 %s, %s, 1' % (sCnt, sCnt))
    e('s_cbranch_scc1 L_qok')
    e('s_cmp_eq_u32 %s, %d' % (sCnt, spin_cap - 1))
    e('s_cbranch_scc0 L_qre2')
    waitfor('r1')
    for k in range(8): e('v_mov_b32 %s, %s' % (v(vG + k), v(vG + 8 + k)))
    e('s_branch L_qchk')
    lab('L_qre2')
    e('s_cmp_gt_u32 %s, %d' % (sCnt, max(spin_cap - fretry, 0)))
    e('s_cbranch_scc1 L_qre3')
    cm('still nothing: publish at device scope and poll both copies in turn')
    e('v_xor_b32 %s, 0x%x, %s' % (v(aQ), QS_X, v(aQ)))
    e('s_cmp_eq_u32 %s, %d' % (sCnt, max(spin_cap - fretry, 0)))
    e('s_cbranch_scc0 L_qre3')
    pubS()
    lab('L_qre3')
    qpoll(vG)
    e('s_waitcnt vmcnt(0)')
    e('s_branch L_qchk')
    lab('L_hretry')
    stamp('ppub', True)
    e('s_sub_u32 %s, %s, 1' % (sCnt, sCnt))
    e('s_cbranch_scc1 L_hok')
    e('global_load_dwordx4 %s, %s, %s sc1' % (vr(hg, 4), v(aX2), sWs))
    e('s_waitcnt vmcnt(0)')
    e('s_branch L_hchk')
    lab('L_oslow')
    e('global_store_dwordx4 %s, %s, %s sc1' % (v(aO), vr(pb, 4), sWs))
    e('s_branch L_opub')
    lab('L_rslow')
    e('global_store_dwordx4 %s, %s, %s sc1' % (v(aR), vr(vAcc, 4), sWs))
    e('s_branch L_rpub')
    body = fix_hazards(L)
    if hops:
        body = place_pads(body, [('L_pad0', 'L_hub', None, 256)] + [('L_pad%d' % k, 'L_hub', 'L_pad%d' % (k - 1), 1088) for k in range(1, 7)])
    hdr = open('cdna_kernels/%s.s.ref' % NAME).read().split('\n')
    hdr = [x for x in hdr if x.startswith(';') and '@launch' not in x]
    if stamps: hdr = ['; stampnames: ' + ' '.join(names)] + hdr
    out = hdr + ['; @launch grid=(256,1,1) block=(320,1,1) lds=%d' % LDS,
        '.amdgcn_target "amdgcn-amd-amdhsa--gfx950"', '.text', '.globl %s_kernel' % NAME, '.p2align 8',
        '.type %s_kernel,@function' % NAME, '%s_kernel:' % NAME] + body + [
        '.section .rodata,"a"', '.p2align 6', '.amdhsa_kernel %s_kernel' % NAME,
        '  .amdhsa_next_free_vgpr %d' % NV, '  .amdhsa_next_free_sgpr 96', '  .amdhsa_accum_offset %d' % NV,
        '  .amdhsa_group_segment_fixed_size 0', '  .amdhsa_kernarg_size 104', '  .amdhsa_user_sgpr_count 2',
        '  .amdhsa_user_sgpr_kernarg_segment_ptr 1', '  .amdhsa_system_sgpr_workgroup_id_x 1',
        '  .amdhsa_float_denorm_mode_32 3', '.end_amdhsa_kernel', '']
    return '\n'.join(out)

if __name__ == '__main__':
    kw = {}
    for a in sys.argv[2:]:
        k, x = a.split('=')
        try: x = eval(x)
        except Exception: pass
        kw[k] = x
    open(sys.argv[1], 'w').write(gen(**kw))
```

```python
import re

DPP_ALL = True
TRANS = ('v_exp_', 'v_log_', 'v_rcp_', 'v_rsq_', 'v_sqrt_', 'v_sin_', 'v_cos_')

def regs_of(tok):
    tok = tok.strip()
    tok = tok.lstrip('-')
    m = re.fullmatch(r'abs\((.*)\)', tok)
    if m: tok = m.group(1)
    tok = tok.strip('|')
    m = re.fullmatch(r'([vsa])(\d+)', tok)
    if m: return {(m.group(1), int(m.group(2)))}
    m = re.fullmatch(r'([vsa])\[(\d+):(\d+)\]', tok)
    if m: return {(m.group(1), i) for i in range(int(m.group(2)), int(m.group(3)) + 1)}
    if tok in ('vcc', 'vcc_lo', 'vcc_hi'): return {('s', 'vcc')}
    if tok in ('exec', 'exec_lo', 'exec_hi'): return {('s', 'exec')}
    if tok == 'm0': return {('s', 'm0')}
    return set()

class Ins:
    def __init__(self, text):
        self.text = text
        code = text.split(';')[0].strip()
        self.label = None
        self.op = None
        self.w = set(); self.r = set()
        self.cls = None
        if not code or code.startswith('.') and not code.endswith(':'):
            self.cls = 'none'; return
        if code.endswith(':'):
            self.label = code[:-1]; self.cls = 'none'; return
        parts = code.split(None, 1)
        self.op = op = parts[0]
        rest = parts[1] if len(parts) > 1 else ''
        ops = []; depth = 0; cur = ''
        for ch in rest:
            if ch in '[(': depth += 1
            if ch in '])': depth -= 1
            if ch == ',' and depth == 0:
                ops.append(cur.strip()); cur = ''
            else: cur += ch
        if cur.strip(): ops.append(cur.strip())
        mods = ''
        if ops:
            last = ops[-1].split(None, 1)
            ops[-1] = last[0]
            if len(last) > 1: mods = last[1]
        self.ops = ops; self.mods = mods
        R = [regs_of(o) for o in ops]
        self.dpp = ('_dpp' in op) or ('row_' in mods) or ('quad_perm' in mods)
        self.sdwa = '_sdwa' in op
        if op.startswith('v_mfma'):
            self.cls = 'mfma'; self.w = R[0]; self.A = R[1]; self.B = R[2]; self.C = R[3]
            self.r = R[1] | R[2] | R[3]
            self.passes = 8 if ('32x32x16' in op or '16x16x4_f32' in op) else (16 if '32x32x2_f32' in op else 4)
            self.sgemm = op.endswith('_f32') and ('x4_f32' in op or 'x2_f32' in op or 'x1_' in op)
        elif op.startswith('v_'):
            self.cls = 'valu'
            if op == 'v_nop': return
            if op.startswith('v_permlane') and 'swap' in op:
                self.w = R[0] | R[1]; self.r = R[0] | R[1]
            elif op.startswith('v_cmp'):
                self.w = R[0]; self.r = set().union(*R[1:])
            elif op.startswith(('v_add_co', 'v_sub_co', 'v_addc_co', 'v_subb_co', 'v_mad_u64')):
                self.w = R[0] | R[1]; self.r = set().union(*R[2:])
            else:
                self.w = R[0]; self.r = set().union(*R[1:]) if len(R) > 1 else set()
                if op.startswith(('v_fmac', 'v_dot2c', 'v_pk_fmac', 'v_writelane')) or self.dpp or self.sdwa:
                    self.r |= R[0]
            self.trans = op.startswith(TRANS)
            self.dppsrc = (self.r if DPP_ALL else R[1]) if self.dpp else set()
        elif op.startswith(('global_', 'buffer_', 'flat_')):
            self.cls = 'vmem'
            allr = set().union(*R) if R else set()
            if 'load' in op and 'lds' not in op and 'lds' not in mods.split():
                self.w = R[0]; self.r = set().union(*R[1:])
                if 'd16' in op: self.r |= R[0]
            elif 'atomic' in op and 'sc0' in mods.split() and op.startswith('global_'):
                self.w = R[0]; self.r = set().union(*R[1:])
            else:
                self.r = allr
            self.widestore = ('store' in op) and (op.endswith('x3') or op.endswith('x4'))
            self.sdata = set()
            if self.widestore:
                self.sdata = R[1] if op.startswith(('global_', 'flat_')) else R[0]
            self.ldsdma = ('lds' in op) or ('lds' in mods.split())
        elif op.startswith('ds_'):
            self.cls = 'ds'
            if op.startswith(('ds_read', 'ds_bpermute', 'ds_permute', 'ds_swizzle')) or '_rtn' in op:
                self.w = R[0]; self.r = set().union(*R[1:]) if len(R) > 1 else set()
            else:
                self.r = set().union(*R)
        elif op.startswith('s_'):
            self.cls = 'salu'
            if op.startswith(('s_cmp', 's_cbranch', 's_branch', 's_waitcnt', 's_nop', 's_barrier', 's_endpgm', 's_setprio', 's_sleep', 's_bitcmp')):
                self.r = set().union(*R) if R else set()
            else:
                self.w = R[0] if R else set()
                self.r = set().union(*R[1:]) if len(R) > 1 else set()
                if 'saveexec' in op: self.w |= {('s', 'exec')}
        else:
            raise ValueError('unknown op: ' + text)

    def states(self):
        if self.cls == 'none': return 0
        if self.op == 's_nop': return int(self.ops[0]) + 1
        return 1

def V(s): return {x for x in s if x[0] in 'va'}
def S(s): return {x for x in s if x[0] == 's'}

def need(p, c):
    n = 0
    if p.cls == 'valu':
        vw = V(p.w); sw = S(p.w)
        if c.cls == 'valu':
            if c.dpp and (vw & c.dppsrc): n = max(n, 2)
            if c.op.startswith('v_permlane') and (vw & c.r): n = max(n, 2)
            if c.op.startswith(('v_readlane', 'v_readfirstlane')) and (vw & c.r): n = max(n, 1)
            if getattr(p, 'trans', False) and (vw & c.r): n = max(n, 1)
            if (p.sdwa or 'op_sel:' in p.mods) and (vw & (c.r | c.w)): n = max(n, 1)
            if sw & c.r:
                n = max(n, 4 if c.op.startswith(('v_readlane', 'v_writelane')) else 2)
            if ('s', 'vcc') in sw and c.op.startswith('v_div_fmas'): n = max(n, 4)
        if c.cls == 'mfma' and (vw & c.r): n = max(n, 2)
        if c.cls == 'vmem' and (sw & c.r): n = max(n, 5)
        if c.cls in ('vmem', 'ds') and getattr(p, 'trans', False) and (vw & c.r): n = max(n, 1)
    if p.cls == 'mfma':
        k = {4: 0, 8: 1, 16: 2}[p.passes]
        if not p.sgemm:
            full = [8, 12, 20][k]; ovl = [6, 10, 18][k]; war = [3, 7, 15][k]
        else:
            full = [6, 10, 18][k]; ovl = [4, 8, 16][k]; war = 0
        if c.cls == 'mfma':
            if p.w & (c.A | c.B): n = max(n, full)
            if p.w & c.C and not (p.w == c.C and p.passes == c.passes and p.sgemm == c.sgemm): n = max(n, ovl)
            if p.w & c.w and not (p.w & c.C): n = max(n, ovl)
        elif c.cls in ('valu', 'vmem', 'ds'):
            if p.w & (c.r | c.w): n = max(n, full)
            if c.cls == 'valu' and (p.C & c.w): n = max(n, war)
    if p.cls == 'vmem' and getattr(p, 'widestore', False):
        if c.cls in ('valu', 'mfma') and (p.sdata & c.w): n = max(n, 2)
        elif c.cls in ('vmem', 'ds') and (p.sdata & c.w): n = max(n, 1)
    if p.cls == 'salu' and ('s', 'm0') in p.w:
        if c.cls == 'vmem' and c.ldsdma: n = max(n, 1)
    return n

def fix_hazards(lines, verbose=False):
    ins = [Ins(l) for l in lines]
    changed = True
    total = 0
    while changed:
        changed = False
        labels = {x.label: i for i, x in enumerate(ins) if x.label}
        preds = [[] for _ in ins]
        for i, x in enumerate(ins):
            if x.op in ('s_branch',) or (x.op and x.op.startswith('s_cbranch')):
                if x.ops[0] in labels: preds[labels[x.ops[0]]].append(i)
                else: assert x.ops[0].startswith('L_pad'), x.text
            if i + 1 < len(ins) and x.op not in ('s_branch', 's_endpgm'):
                preds[i + 1].append(i)
        for i, c in enumerate(ins):
            if c.cls in ('none', 'salu'): continue
            worst = 0
            stack = [(p, 0) for p in preds[i]]
            seen = {}
            while stack:
                j, d = stack.pop()
                if d >= 20: continue
                if j in seen and seen[j] <= d: continue
                seen[j] = d
                p = ins[j]
                if p.cls != 'none':
                    n = need(p, c)
                    if n - d > worst: worst = n - d
                for q in preds[j]:
                    stack.append((q, d + p.states()))
            if worst > 0:
                if verbose: print('nop %d before: %s' % (worst, c.text.strip()))
                new = []
                k = worst
                while k > 0:
                    m = min(k, 16); new.append(Ins('    s_nop %d' % (m - 1))); k -= m
                ins[i:i] = new
                total += worst
                changed = True
                break
    return [x.text for x in ins]


def addresses(body, extra_labels=()):
    import subprocess, tempfile
    d = tempfile.mkdtemp()
    src = ['.amdgcn_target "amdgcn-amd-amdhsa--gfx950"', '.text']
    for k, l in enumerate(body): src += ['ZZ%d:' % k, l]
    src += ['%s:' % x for x in extra_labels] + ['s_endpgm', '']
    open(d + '/a.s', 'w').write('\n'.join(src))
    subprocess.check_call(['clang', '-x', 'assembler', '-target', 'amdgcn-amd-amdhsa', '-mcpu=gfx950', '-c', d + '/a.s', '-o', d + '/a.o'])
    out = subprocess.check_output(['llvm-objdump', '-t', d + '/a.o']).decode()
    ad = {int(m.group(2)): int(m.group(1), 16) for m in re.finditer(r'([0-9a-f]{16}) .* ZZ(\d+)$', out, re.M)}
    return [ad[k] for k in range(len(body))]

def place_pads(body, specs, chain=False):
    body = list(body)
    todo = [s[0] for s in specs]
    for name, ret, ref, dist in specs:
        ad = addresses([x_.replace('CPFOFF', '0') for x_ in body], todo)
        base = 0 if ref is None else ad[body.index(ref + ':')] & ~63
        tgt = base + dist
        ok = []; z = False
        for l in body:
            ok.append(not z)
            c = l.split(';')[0].strip()
            if c == 's_mov_b64 exec, 0' or c[:-1] in [s_[1] for s_ in specs if not (chain and s_[1].startswith('L_pad'))]: z = True
            elif c == 's_mov_b64 exec, -1' or c == 'L_G0:': z = False
        idx = [i for i, l in enumerate(body) if ad[i] >= tgt and Ins(l).cls != 'none' and ok[i]]
        todo.remove(name)
        if not idx:
            body += [name + ':', '    s_branch %s' % ret]; continue
        i = idx[0]
        assert ad[i] < tgt + 64
        body[i:i] = [name + ':', '    s_cbranch_execz %s' % ret]
    return body
```

```python
import re, sys, struct
import numpy as np
sys.path.insert(0, 'work')
from asmlib import Ins
np.seterr(all='ignore')
U32 = np.uint32; F32 = np.float32
LANES = np.arange(64)

def bf16_round(x):
    x = np.asarray(x, dtype=F32)
    u = x.view(U32).astype(np.uint64)
    r = ((u + 0x7fff + ((u >> 16) & 1)) >> 16).astype(U32) & 0xffff
    nan = np.isnan(x)
    r = np.where(nan, U32(0x7fc0), r).astype(U32)
    return r
def bf16_to_f32(h): return (np.asarray(h, dtype=U32) << 16).view(F32)

class Mem:
    def __init__(self):
        self.bufs = []
        self.next = 0x7f0000000000
        self.log = None
        self.ov = {}
    def overlay(self, xcc, name, arr):
        if (xcc, name) not in self.ov: self.ov[(xcc, name)] = (np.zeros(arr.size, np.uint8), np.zeros(arr.size, bool), arr)
        return self.ov[(xcc, name)]
    def flush(self):
        for d, m, arr in self.ov.values(): arr[m] = d[m]
        self.ov = {}
    def add(self, name, arr, writable=False):
        arr = np.ascontiguousarray(arr).view(np.uint8).reshape(-1)
        base = self.next
        self.next += (arr.size + (4 << 20)) // (2 << 20) * (2 << 20)
        self.bufs.append((base, arr, name, writable))
        return base
    def find(self, addr, n, write):
        for base, arr, name, wr in self.bufs:
            if base <= addr and addr + n <= base + arr.size:
                if write and not wr: raise RuntimeError('write to read-only buffer %s' % name)
                return arr, addr - base, name
        raise RuntimeError('OOB access addr=%x n=%d' % (addr, n))
    def load(self, addrs, n, mask, xcc=0):
        out = np.zeros((64, n), dtype=np.uint8)
        idx = np.nonzero(mask)[0]
        if len(idx) == 0: return out
        lo = int(addrs[idx].min()); hi = int(addrs[idx].max())
        arr, off, name = self.find(lo, hi - lo + n, False)
        rel = (addrs[idx] - np.uint64(lo)).astype(np.int64) + off
        if n >= 4 and (rel % 4).any(): raise RuntimeError('misaligned load')
        ii = rel[:, None] + np.arange(n)[None, :]
        out[idx] = arr[ii]
        if (xcc, name) in self.ov:
            d, m, _ = self.ov[(xcc, name)]
            out[idx] = np.where(m[ii], d[ii], out[idx])
        if self.log is not None: self.log.append((name, rel, n))
        return out
    def store(self, addrs, data, mask, xcc=0, sc1=True):
        idx = np.nonzero(mask)[0]
        if len(idx) == 0: return
        n = data.shape[1]
        lo = int(addrs[idx].min()); hi = int(addrs[idx].max())
        arr, off, name = self.find(lo, hi - lo + n, True)
        rel = (addrs[idx] - np.uint64(lo)).astype(np.int64) + off
        ii = rel[:, None] + np.arange(n)[None, :]
        if sc1:
            for (x, nm), (d, m, _) in self.ov.items():
                if nm == name and m[(ii // 128 * 128)[:, :1] + np.arange(128)[None, :]].any(): raise RuntimeError('sc1 store to a line that is dirty in some L2')
            arr[ii] = data[idx]
        else:
            d, m, _ = self.overlay(xcc, name, arr); d[ii] = data[idx]; m[ii] = True

def parse(text, entry):
    prog = []; labels = {}
    started = False
    for line in text.split('\n'):
        code = line.split(';')[0].strip()
        if not code: continue
        if code.endswith(':'):
            labels[code[:-1]] = len(prog); continue
        if code.startswith('.'): continue
        parts = code.split(None, 1)
        op = parts[0]; rest = parts[1] if len(parts) > 1 else ''
        ops = []; depth = 0; cur = ''
        for ch in rest:
            if ch in '[(': depth += 1
            if ch in '])': depth -= 1
            if ch == ',' and depth == 0: ops.append(cur.strip()); cur = ''
            else: cur += ch
        if cur.strip(): ops.append(cur.strip())
        mods = {}
        if ops and op not in ('s_waitcnt',):
            last = ops[-1].split(None, 1); ops[-1] = last[0]
            if len(last) > 1:
                for m in re.findall(r'(\w+)(?::(\[[^\]]*\]|\S+))?', last[1]): mods[m[0]] = m[1]
        for sfx in ('_e32', '_e64'):
            if op.endswith(sfx): op = op[:-4]
        prog.append((op, ops, mods, line, Ins(line)))
    return prog, labels

INL = {'0.5': 0.5, '-0.5': -0.5, '1.0': 1.0, '-1.0': -1.0, '2.0': 2.0, '-2.0': -2.0, '4.0': 4.0, '-4.0': -4.0}
class Wave:
    def __init__(self, wg, wid, nv=512):
        rng = np.random.RandomState(wg.id * 16 + wid)
        self.v = rng.randint(0, 2**32, size=(nv, 64), dtype=np.uint64).astype(U32)
        self.v[:, ::3] = 0x7fc00000
        self.s = {i: int(rng.randint(0, 2**32, dtype=np.uint64)) for i in range(104)}
        self.vcc = 0; self.exec = (1 << 64) - 1; self.scc = 0; self.m0 = 0
        self.vmq = []; self.lgq = []
        self.pc = 0; self.wg = wg; self.done = False; self.atbar = False
        self.v[0] = (wid * 64 + LANES).astype(U32)
    def mask(self): return ((self.exec >> LANES.astype(object)) & 1).astype(bool) if self.exec != (1 << 64) - 1 else np.ones(64, bool)
    def sget(self, t):
        if t == 'vcc': return self.vcc
        if t == 'exec': return self.exec
        if t == 'exec_lo': return self.exec & 0xffffffff
        if t == 'exec_hi': return self.exec >> 32
        if t == 'vcc_lo': return self.vcc & 0xffffffff
        if t == 'vcc_hi': return self.vcc >> 32
        if t == 'm0': return self.m0
        m = re.fullmatch(r's(\d+)', t)
        if m: return self.s[int(m.group(1))]
        m = re.fullmatch(r's\[(\d+):(\d+)\]', t)
        if m:
            a, b = int(m.group(1)), int(m.group(2)); r = 0
            for i in range(a, b + 1): r |= self.s[i] << (32 * (i - a))
            return r
        if t in INL: return struct.unpack('<I', struct.pack('<f', INL[t]))[0]
        if t.startswith('L_'): return 8000
        return int(t, 0)
    def sset(self, t, val):
        if t == 'vcc': self.vcc = val & (2**64 - 1); return
        if t == 'exec': self.exec = val & (2**64 - 1); return
        if t == 'exec_lo': self.exec = (self.exec & ~0xffffffff) | (val & 0xffffffff); return
        if t == 'exec_hi': self.exec = (self.exec & 0xffffffff) | ((val & 0xffffffff) << 32); return
        if t == 'vcc_lo': self.vcc = (self.vcc & ~0xffffffff) | (val & 0xffffffff); return
        if t == 'vcc_hi': self.vcc = (self.vcc & 0xffffffff) | ((val & 0xffffffff) << 32); return
        if t == 'm0': self.m0 = val & 0xffffffff; return
        m = re.fullmatch(r's(\d+)', t)
        if m: self.s[int(m.group(1))] = val & 0xffffffff; return
        m = re.fullmatch(r's\[(\d+):(\d+)\]', t)
        a, b = int(m.group(1)), int(m.group(2))
        for i in range(a, b + 1): self.s[i] = (val >> (32 * (i - a))) & 0xffffffff
    def vidx(self, t):
        m = re.fullmatch(r'([va])(\d+)', t)
        if m: return int(m.group(2)) + (256 if m.group(1) == 'a' else 0), 1
        m = re.fullmatch(r'([va])\[(\d+):(\d+)\]', t)
        if m: return int(m.group(2)) + (256 if m.group(1) == 'a' else 0), int(m.group(3)) - int(m.group(2)) + 1
        return None
    def get(self, t):
        neg = False; ab = False
        if t.startswith('-') and t[1] in 'vs|a' : neg = True; t = t[1:]
        if t.startswith('abs('): ab = True; t = t[4:-1]
        if t.startswith('|'): ab = True; t = t[1:-1]
        x = self.vidx(t)
        r = self.v[x[0]].copy() if x else np.full(64, self.sget(t) & 0xffffffff, dtype=U32)
        if ab: r &= U32(0x7fffffff)
        if neg: r ^= U32(0x80000000)
        return r
    def put(self, t, val, mask=None):
        i, _ = self.vidx(t)
        m = self.mask() if mask is None else mask
        val = np.asarray(val)
        if val.dtype == F32: val = val.view(U32)
        self.v[i][m] = val.astype(U32)[m]

def f(x): return x.view(F32)
def bits(b):
    r = 0
    for i in np.nonzero(b)[0]: r |= 1 << int(i)
    return r
def tomask(x): return np.array([(x >> i) & 1 for i in range(64)], dtype=bool)

def dpp_src(w, src, mods):
    ok = np.ones(64, bool); l = LANES; row = l & ~15; c = l & 15
    if 'quad_perm' in mods:
        p = np.array(eval(mods['quad_perm'])); idx = (l & ~3) + p[l & 3]
    elif 'row_shr' in mods:
        n = int(mods['row_shr']); idx = l - n; ok = c >= n
    elif 'row_shl' in mods:
        n = int(mods['row_shl']); idx = l + n; ok = c + n < 16
    elif 'row_ror' in mods:
        n = int(mods['row_ror']); idx = row + ((c - n) & 15)
    elif 'row_half_mirror' in mods: idx = (l & ~7) + (7 - (l & 7))
    elif 'row_mirror' in mods: idx = row + (15 - c)
    elif 'row_bcast' in mods:
        n = int(mods['row_bcast'])
        if n == 15: idx = row - 1; ok = l >= 16
        else: idx = np.full(64, 31); ok = l >= 32
    elif 'row_newbcast' in mods:
        idx = row + int(mods['row_newbcast'])
    else: raise RuntimeError('dpp?')
    idx = np.clip(idx, 0, 63)
    em = w.mask()
    ok = ok & em[idx]
    val = src[idx].copy()
    wm = em.copy()
    if 'bound_ctrl' in mods: val[~ok] = 0
    else: wm &= ok
    rm = int(mods.get('row_mask', '0xf'), 0); bm = int(mods.get('bank_mask', '0xf'), 0)
    wm &= ((rm >> (l >> 4)) & 1).astype(bool) & ((bm >> ((l >> 2) & 3)) & 1).astype(bool)
    return val, wm

def fma(a, b, c): return (a.astype(np.float64) * b.astype(np.float64) + c.astype(np.float64)).astype(F32)
VOP = {
 'v_mov_b32': lambda a: a,
 'v_and_b32': lambda a, b: a & b, 'v_or_b32': lambda a, b: a | b, 'v_xor_b32': lambda a, b: a ^ b,
 'v_add_u32': lambda a, b: a + b, 'v_sub_u32': lambda a, b: a - b, 'v_subrev_u32': lambda a, b: b - a,
 'v_lshlrev_b32': lambda a, b: b << (a & 31), 'v_lshrrev_b32': lambda a, b: b >> (a & 31),
 'v_min_u32': np.minimum, 'v_max_u32': np.maximum,
 'v_mul_u32_u24': lambda a, b: ((a & 0xffffff).astype(np.uint64) * (b & 0xffffff)).astype(U32),
 'v_mul_lo_u32': lambda a, b: (a.astype(np.uint64) * b).astype(U32),
 'v_mad_u32_u24': lambda a, b, c: ((a & 0xffffff).astype(np.uint64) * (b & 0xffffff) + c).astype(U32),
 'v_bfe_u32': lambda a, b, c: (a >> (b & 31)) & ((U32(1) << (c & 31)) - U32(1)),
 'v_bfi_b32': lambda a, b, c: (a & b) | (~a & c),
 'v_lshl_add_u32': lambda a, b, c: (a << (b & 31)) + c,
 'v_add_lshl_u32': lambda a, b, c: (a + b) << (c & 31),
 'v_lshl_or_b32': lambda a, b, c: (a << (b & 31)) | c,
 'v_and_or_b32': lambda a, b, c: (a & b) | c,
 'v_add3_u32': lambda a, b, c: a + b + c, 'v_or3_b32': lambda a, b, c: a | b | c,
 'v_add_f32': lambda a, b: f(a) + f(b), 'v_sub_f32': lambda a, b: f(a) - f(b), 'v_subrev_f32': lambda a, b: f(b) - f(a),
 'v_mul_f32': lambda a, b: f(a) * f(b),
 'v_max_f32': lambda a, b: np.fmax(f(a), f(b)), 'v_min_f32': lambda a, b: np.fmin(f(a), f(b)),
 'v_max3_f32': lambda a, b, c: np.fmax(np.fmax(f(a), f(b)), f(c)),
 'v_fma_f32': lambda a, b, c: fma(f(a), f(b), f(c)),
 'v_exp_f32': lambda a: np.exp2(f(a)), 'v_log_f32': lambda a: np.log2(f(a)),
 'v_rcp_f32': lambda a: F32(1) / f(a), 'v_sqrt_f32': lambda a: np.sqrt(f(a)), 'v_rsq_f32': lambda a: F32(1) / np.sqrt(f(a)),
 'v_cvt_pk_bf16_f32': lambda a, b: bf16_round(f(a)) | (bf16_round(f(b)) << 16),
}
def vperm(a, b, s):
    src = np.concatenate([b.view(np.uint8).reshape(64, 4), a.view(np.uint8).reshape(64, 4)], axis=1)
    out = np.zeros((64, 4), np.uint8); sb = s.view(np.uint8).reshape(64, 4)
    for k in range(4):
        sel = sb[:, k]
        out[:, k] = np.where(sel < 8, src[LANES, np.minimum(sel, 7)], np.where(sel == 0x0c, 0, 0xff))
    return out.reshape(-1).view(U32)
VOP['v_perm_b32'] = vperm
CMP = {'eq': np.equal, 'ne': np.not_equal, 'lt': np.less, 'gt': np.greater, 'le': np.less_equal, 'ge': np.greater_equal,
       'neq': np.not_equal, 'lg': np.not_equal}
SZ = {'dword': 4, 'dwordx2': 8, 'dwordx3': 12, 'dwordx4': 16, 'ushort': 2, 'short': 2}
DSZ = {'b32': 4, 'b64': 8, 'b96': 12, 'b128': 16, 'u16': 2, 'b16': 2}

import os
def XCC(i):
    m = os.environ.get('XCC', 'rr')
    return i % 8 if m == 'rr' else ((i % 8) if i != 77 else 3) if m == 'one' else (i * 7 // 3) % 8
class WG:
    def __init__(self, id, nw, lds):
        self.id = id
        self.lds = np.random.RandomState(id).randint(0, 256, size=max(lds, 4)).astype(np.uint8)
        self.waves = [Wave(self, i) for i in range(nw)]

def step(w, prog, labels, mem, clock):
    while True:
        op, ops, mods, line, ins = prog[w.pc]
        w.pc += 1
        try:
            if op == 's_waitcnt':
                m = re.search(r'vmcnt\((\d+)\)', line)
                if m:
                    n = int(m.group(1))
                    while len(w.vmq) > n: w.vmq.pop(0)
                m = re.search(r'lgkmcnt\((\d+)\)', line)
                if m:
                    n = int(m.group(1))
                    if n == 0: w.lgq = []
                    else:
                        ds = [x for x in w.lgq if x[0] == 'ds']; sm = [x for x in w.lgq if x[0] == 'sm']
                        while len(ds) > n: ds.pop(0)
                        w.lgq = sm + ds
            else:
                rw = ins.r | (ins.w if ins.cls != 'vmem' else set())
                for q in w.vmq:
                    if q & rw: raise RuntimeError('use of pending vmem dest %s' % (q & rw))
                rw = ins.r | (ins.w if ins.cls != 'ds' else set())
                for k, q in w.lgq:
                    if q & rw and 'RACE' not in line: raise RuntimeError('use of pending lgkm dest %s' % (q & rw))
                if ins.cls == 'vmem':
                    w.vmq.append(set(ins.w)); assert len(w.vmq) <= 63
                elif ins.cls == 'ds': w.lgq.append(('ds', set(ins.w) | ({'LDSW'} if not ins.w else set())))
                elif op.startswith(('s_load', 's_memrealtime', 's_memtime')): w.lgq.append(('sm', set(ins.w)))
                if op == 's_barrier':
                    assert not any('LDSW' in q for k, q in w.lgq), 'barrier with pending LDS write'
            if op.startswith('s_'):
                if op in ('s_waitcnt', 's_nop', 's_setprio', 's_sleep'): continue
                if op == 's_endpgm': w.done = True; return
                if op == 's_barrier': w.atbar = True; return
                if op == 's_branch' or op.startswith('s_cbranch'):
                    c = {'s_branch': True, 's_cbranch_scc0': w.scc == 0, 's_cbranch_scc1': w.scc == 1,
                         's_cbranch_vccz': w.vcc == 0, 's_cbranch_vccnz': w.vcc != 0,
                         's_cbranch_execz': w.exec == 0, 's_cbranch_execnz': w.exec != 0}[op]
                    if c:
                        t = labels[ops[0]]; back = t < w.pc; w.pc = t
                        if back: return
                    continue
                if op.startswith('s_load_dword'):
                    n = {'s_load_dword': 1, 's_load_dwordx2': 2, 's_load_dwordx4': 4, 's_load_dwordx8': 8, 's_load_dwordx16': 16}[op]
                    a = w.sget(ops[1]) + w.sget(ops[2])
                    arr, off, _ = mem.find(a, 4 * n, False)
                    w.sset(ops[0], int.from_bytes(arr[off:off + 4 * n].tobytes(), 'little')); continue
                if op in ('s_memrealtime', 's_memtime'): w.sset(ops[0], clock[0]); clock[0] += 1; continue
                if op == 's_getreg_b32': w.sset(ops[0], XCC(w.wg.id)); continue
                if op == 's_getpc_b64': w.sset(ops[0], mem.codebase); continue
                if op.startswith('s_cmp_') or op.startswith('s_cmpk_'):
                    _, _, c, ty = op.split('_'); a = w.sget(ops[0]); b = w.sget(ops[1])
                    if ty != 'u64': a &= 0xffffffff; b &= 0xffffffff
                    if ty == 'i32':
                        a = a - (1 << 32) if a >> 31 else a; b = b - (1 << 32) if b >> 31 else b
                    w.scc = int(CMP[c](a, b))
                    if 'RACE' in line: w.scc = (w.wg.id >> 4) & 1
                    continue
                if op == 's_bitcmp1_b32': w.scc = (w.sget(ops[0]) >> (w.sget(ops[1]) & 31)) & 1; continue
                if op == 's_bitcmp0_b32': w.scc = 1 - ((w.sget(ops[0]) >> (w.sget(ops[1]) & 31)) & 1); continue
                W = 64 if op.endswith('64') else 32; M = (1 << W) - 1
                def g(t):
                    x = w.sget(t)
                    return x & M
                if op in ('s_mov_b32', 's_mov_b64', 's_movk_i32'): w.sset(ops[0], g(ops[1])); continue
                if op in ('s_not_b32', 's_not_b64'):
                    r = ~g(ops[1]) & M; w.scc = int(r != 0); w.sset(ops[0], r); continue
                if op == 's_and_saveexec_b64':
                    x = g(ops[1]); w.sset(ops[0], w.exec); w.exec &= x; w.scc = int(w.exec != 0); continue
                if op == 's_addk_i32': w.sset(ops[0], (g(ops[0]) + int(ops[1], 0)) & M); continue
                a = g(ops[1]); b = g(ops[2])
                if op == 's_add_u32': r = a + b; w.scc = r >> 32
                elif op == 's_addc_u32': r = a + b + w.scc; w.scc = r >> 32
                elif op == 's_sub_u32': r = a - b; w.scc = int(b > a)
                elif op == 's_add_i32': r = a + b
                elif op == 's_sub_i32': r = a - b
                elif op == 's_mul_i32': r = a * b
                elif op.startswith('s_and_b'): r = a & b; w.scc = int(r != 0)
                elif op.startswith('s_andn2_b'): r = a & ~b; w.scc = int((r & M) != 0)
                elif op.startswith('s_or_b'): r = a | b; w.scc = int(r != 0)
                elif op.startswith('s_xor_b'): r = a ^ b; w.scc = int(r != 0)
                elif op.startswith('s_lshl_b'): r = a << (b & (W - 1)); w.scc = int((r & M) != 0)
                elif op.startswith('s_lshr_b'): r = a >> (b & (W - 1)); w.scc = int(r != 0)
                elif op == 's_bfe_u32': r = (a >> (b & 31)) & ((1 << ((b >> 16) & 0x7f)) - 1); w.scc = int(r != 0)
                elif op.startswith('s_cselect'): r = a if w.scc else b
                elif op == 's_min_u32': r = min(a, b); w.scc = int(a < b)
                elif op == 's_max_u32': r = max(a, b); w.scc = int(a > b)
                elif re.fullmatch(r's_lshl(\d)_add_u32', op): r = (a << int(op[6])) + b; w.scc = int(r >> 32 != 0)
                else: raise RuntimeError('unimpl')
                w.sset(ops[0], r & M); continue
            if op.startswith('v_mfma_f32_16x16x32_bf16'):
                d, _ = w.vidx(ops[0]); a, _ = w.vidx(ops[1]); b, _ = w.vidx(ops[2])
                assert w.exec == (1 << 64) - 1, 'mfma with partial exec'
                def unp(i):
                    x = w.v[i:i + 4].T.copy().view(np.uint16).reshape(64, 8)
                    x = bf16_to_f32(x).reshape(4, 16, 8).transpose(1, 0, 2).reshape(16, 32)
                    return x.astype(np.float64)
                D = unp(a) @ unp(b).T
                D = D.reshape(4, 4, 16).transpose(1, 0, 2).reshape(4, 64)
                c = w.vidx(ops[3])
                C = f(w.v[c[0]:c[0] + 4]).astype(np.float64) if c else float(struct.unpack('<f', struct.pack('<I', w.sget(ops[3])))[0])
                w.v[d:d + 4] = (D + C).astype(F32).view(U32); continue
            if op.startswith('v_'):
                if op == 'v_nop': continue
                base = op[:-4] if op.endswith('_dpp') else op
                if op == 'v_readfirstlane_b32':
                    m = w.mask(); i = int(np.argmax(m)) if m.any() else 0
                    w.sset(ops[0], int(w.get(ops[1])[i])); continue
                if op == 'v_readlane_b32': w.sset(ops[0], int(w.get(ops[1])[w.sget(ops[2]) & 63])); continue
                if op == 'v_writelane_b32': w.v[w.vidx(ops[0])[0]][w.sget(ops[2]) & 63] = w.sget(ops[1]) & 0xffffffff; continue
                if op == 'v_permlane32_swap_b32':
                    assert w.exec == (1 << 64) - 1
                    x, y = w.v[w.vidx(ops[0])[0]], w.v[w.vidx(ops[1])[0]]
                    t = x[32:].copy(); x[32:] = y[:32]; y[:32] = t; continue
                if op == 'v_permlane16_swap_b32':
                    assert w.exec == (1 << 64) - 1
                    x, y = w.v[w.vidx(ops[0])[0]], w.v[w.vidx(ops[1])[0]]
                    for o in (0, 32):
                        t = x[o + 16:o + 32].copy(); x[o + 16:o + 32] = y[o:o + 16]; y[o:o + 16] = t
                    continue
                if op.startswith('v_cmp_'):
                    _, _, c, ty = op.split('_'); a = w.get(ops[1]); b = w.get(ops[2])
                    if ty == 'f32': a = f(a); b = f(b)
                    if ty == 'i32': a = a.view(np.int32); b = b.view(np.int32)
                    w.sset(ops[0], bits(CMP[c](a, b) & w.mask())); continue
                if base == 'v_cndmask_b32':
                    m = tomask(w.sget(ops[3])); a = w.get(ops[1]); wm = None
                    if op.endswith('_dpp'): a, wm = dpp_src(w, a, mods)
                    w.put(ops[0], np.where(m, w.get(ops[2]), a), wm); continue
                if op in ('v_pk_add_f32', 'v_pk_mul_f32', 'v_pk_fma_f32'):
                    n = len(ops) - 1
                    sel = eval(mods.get('op_sel', str([0] * n))); selh = eval(mods.get('op_sel_hi', str([1] * n)))
                    nlo = eval(mods.get('neg_lo', str([0] * n))); nhi = eval(mods.get('neg_hi', str([0] * n)))
                    def pg(t, k, ng):
                        x = w.vidx(t)
                        if x: r = f(w.v[x[0] + k].copy())
                        else:
                            s = w.sget(t); r = f(np.full(64, (s >> (32 * k)) & 0xffffffff if t.startswith('s[') else s & 0xffffffff, dtype=U32))
                        return -r if ng else r
                    lo = [pg(ops[1 + i], sel[i], nlo[i]) for i in range(n)]; hi = [pg(ops[1 + i], selh[i], nhi[i]) for i in range(n)]
                    fn = {'v_pk_add_f32': lambda a, b: a + b, 'v_pk_mul_f32': lambda a, b: a * b, 'v_pk_fma_f32': fma}[op]
                    d = w.vidx(ops[0])[0]; r0 = fn(*lo); r1 = fn(*hi)
                    w.put('v%d' % d, r0); w.put('v%d' % (d + 1), r1); continue
                if op == 'v_bitop3_b32':
                    a, b, c = [w.get(t) for t in ops[1:4]]; tb = int(mods['bitop3'], 0); r = np.zeros(64, U32)
                    for k in range(8):
                        if (tb >> k) & 1: r |= (a if k & 4 else ~a) & (b if k & 2 else ~b) & (c if k & 1 else ~c)
                    w.put(ops[0], r); continue
                if op in ('v_mbcnt_lo_u32_b32', 'v_mbcnt_hi_u32_b32'):
                    assert ops[1] == '-1'
                    x = np.minimum(LANES, 32) if 'lo' in op else np.maximum(LANES - 32, 0)
                    w.put(ops[0], w.get(ops[2]) + x.astype(U32)); continue
                if op in ('v_accvgpr_write_b32', 'v_accvgpr_read_b32'): w.put(ops[0], w.get(ops[1])); continue
                src = [w.get(t) for t in ops[1:]]; wm = None
                if op.endswith('_dpp'): src[0], wm = dpp_src(w, src[0], mods)
                if base == 'v_fmac_f32': r = fma(f(src[0]), f(src[1]), f(w.get(ops[0])))
                elif base == 'v_fmaak_f32': r = fma(f(src[0]), f(src[1]), f(src[2]))
                elif base == 'v_fmamk_f32': r = fma(f(src[0]), f(src[1]), f(src[2]))
                else: r = VOP[base](*src)
                w.put(ops[0], r, wm); continue
            if op.startswith('global_'):
                off = int(mods.get('offset', '0'), 0); assert -4096 <= off < 4096
                kind = op.split('_')
                if kind[1] == 'load' and kind[2] == 'lds':
                    n = SZ[kind[3]]
                    a = np.uint64(w.sget(ops[1]) + off) + w.get(ops[0]).astype(np.uint64)
                    m = w.mask(); d = mem.load(a, n, m)
                    la = (w.m0 & 0xffff) + off + LANES * n
                    assert (la[m] + n <= w.wg.lds.size).all()
                    w.wg.lds[la[m][:, None] + np.arange(n)[None, :]] = d[m]; continue
                if kind[1] == 'load':
                    n = SZ[kind[2]]
                    a = np.uint64(w.sget(ops[2]) + off) + w.get(ops[1]).astype(np.uint64)
                    m = w.mask(); d = mem.load(a, n, m, XCC(w.wg.id)); i, _ = w.vidx(ops[0])
                    if n == 2:
                        x = d.view(np.uint16).reshape(64).astype(U32)
                        if op.endswith('d16_hi'): x = (w.v[i] & 0xffff) | (x << 16)
                        elif op.endswith('d16'): x = (w.v[i] & U32(0xffff0000)) | x
                        w.v[i][m] = x[m]
                    else:
                        x = d.view(U32).reshape(64, n // 4)
                        for k in range(n // 4): w.v[i + k][m] = x[m, k]
                    continue
                if kind[1] == 'store':
                    n = SZ[kind[2]]
                    a = np.uint64(w.sget(ops[2]) + off) + w.get(ops[0]).astype(np.uint64)
                    i, _ = w.vidx(ops[1])
                    if n == 2:
                        x = (w.v[i] >> 16) if op.endswith('d16_hi') else (w.v[i] & 0xffff)
                        d = x.astype(np.uint16).view(np.uint8).reshape(64, 2)
                    else: d = w.v[i:i + n // 4].T.copy().view(np.uint8).reshape(64, n)
                    mem.store(a, d, w.mask(), XCC(w.wg.id), 'sc1' in mods); continue
                raise RuntimeError('unimpl')
            if op.startswith('ds_'):
                lds = w.wg.lds; m = w.mask()
                if op == 'ds_bpermute_b32':
                    a = (w.get(ops[1]) + int(mods.get('offset', '0'), 0)); s = w.get(ops[2]); idx = (a >> 2) & 63
                    w.put(ops[0], np.where(m[idx], s[idx], 0)); continue
                mm = re.fullmatch(r'ds_(read|write)(2|2st64)?_(\w+)', op)
                n = DSZ[mm.group(3)]
                if mm.group(2):
                    sc = n * (64 if mm.group(2) == '2st64' else 1)
                    offs = [int(mods.get('offset0', '0'), 0) * sc, int(mods.get('offset1', '0'), 0) * sc]
                else: offs = [int(mods.get('offset', '0'), 0)]
                for q, off in enumerate(offs):
                    if mm.group(1) == 'read':
                        a = w.get(ops[1]).astype(np.int64) + off
                        assert (a[m] + n <= lds.size).all(), 'LDS OOB'
                        assert (a[m] % min(n if n != 12 else 16, 16) == 0).all(), 'LDS align'
                        d = np.zeros((64, n), np.uint8); d[m] = lds[a[m][:, None] + np.arange(n)[None, :]]
                        i = w.vidx(ops[0])[0] + q * (n // 4)
                        if q == 0: pend = []
                        pend.append((i, d))
                    else:
                        a = w.get(ops[0]).astype(np.int64) + off
                        assert (a[m] + n <= lds.size).all(), 'LDS OOB'
                        assert (a[m] % min(n if n != 12 else 16, 16) == 0).all(), 'LDS align'
                        i = w.vidx(ops[1 + q])[0]
                        if n == 2: d = (w.v[i] & 0xffff).astype(np.uint16).view(np.uint8).reshape(64, 2)
                        else: d = w.v[i:i + n // 4].T.copy().view(np.uint8).reshape(64, n)
                        lds[a[m][:, None] + np.arange(n)[None, :]] = d[m]
                if mm.group(1) == 'read':
                    for i, d in pend:
                        if n == 2: w.v[i][m] = d.view(np.uint16).reshape(64).astype(U32)[m]
                        else:
                            x = d.view(U32).reshape(64, n // 4)
                            for k in range(n // 4): w.v[i + k][m] = x[m, k]
                continue
            raise RuntimeError('unimpl')
        except Exception as ex:
            print('EMU error in wg %d at: %s' % (w.wg.id, line)); raise

def run(text, entry, grid, block, lds, mem, karg_addr, order=None, maxrounds=10000):
    prog, labels = parse(text, entry)
    wgs = [WG(i, block // 64, lds) if (order is None or i in set(list(order))) else None for i in range(grid)]
    for g in wgs:
        if g is None: continue
        for w in g.waves:
            w.pc = labels[entry]; w.s[0] = karg_addr & 0xffffffff; w.s[1] = karg_addr >> 32; w.s[2] = g.id
    clock = [0]
    if order is not None: wgs = [wgs[i] for i in order]
    for rnd in range(maxrounds):
        alive = False
        for g in wgs:
            for w in g.waves:
                if w.done or w.atbar: continue
                step(w, prog, labels, mem, clock)
            live = [w for w in g.waves if not w.done]
            if live:
                alive = True
                if all(w.atbar for w in live):
                    for w in live: w.atbar = False
        if not alive:
            mem.flush(); return rnd
    raise RuntimeError('emulation did not finish')
```

```python
import sys, re, numpy as np
sys.path.insert(0, 'work')
from emu import *
NAME = 'parallel_sum__sliding_block_cached__dense_activation_gelu__decode'
def bf(x): return bf16_to_f32(bf16_round(x))
def mk(seed):
    r = np.random.RandomState(seed)
    D, Hq, Hkv, Sk, Dh, F = 448, 16, 8, 8192, 256, 1792
    rn = lambda *s: bf(r.standard_normal(s).astype(F32))
    I = {}
    I['x'] = bf(rn(D) * F32(0.05))
    k = np.full((Hkv, Sk, Dh), np.nan, F32); k[:, 6144:] = bf(rn(Hkv, 2048, Dh) * F32(1.6)); I['k'] = k
    v = np.full((Hkv, Sk, Dh), np.nan, F32); v[:, 6144:] = bf(rn(Hkv, 2048, Dh) * F32(0.4)); I['v'] = v
    I['wq'] = bf(bf(rn(D, Hq * Dh) * F32(1.6)) * F32(D ** -0.5))
    I['wo'] = bf(bf(rn(Hq * Dh, D) * F32(0.4)) * F32((Hq * Dh) ** -0.5))
    I['bx'] = bf(rn(D) * F32(0.05))
    I['w1'] = bf(bf(rn(D, F) * F32(0.8)) * F32(D ** -0.5))
    I['b1'] = bf(bf(rn(F) * F32(12.8)) * F32(0.01))
    I['w2'] = bf(bf(rn(F, D) * F32(0.2)) * F32(F ** -0.5))
    I['b2'] = bf(bf(rn(D) * F32(1.6)) * F32(0.01))
    return I
def ref(I, R=bf):
    x = I['x']
    m = R(np.array([x.mean()], F32)); v = R(np.array([x.astype(np.float64).var()], F32))
    xn = R(R(x - m) / R(np.sqrt(R(v + F32(1e-5)))))
    q = R(xn @ I['wq']).reshape(16, 256)
    o = np.zeros((16, 256), F32)
    for h in range(16):
        K = I['k'][h // 2, 6144:]; V = I['v'][h // 2, 6144:]
        s = R(R(K @ q[h]) * F32(1 / 16)); p = np.exp(s - s.max()); p = R(p / p.sum())
        o[h] = R(p @ V)
    A = R(o.reshape(-1) @ I['wo'])
    h = R(R(xn @ I['w1']) + I['b1'])
    g = R(0.5 * h * (1 + np.tanh(np.sqrt(2 / np.pi) * (h + 0.044715 * h ** 3))).astype(F32))
    B = R(R(g @ I['w2']) + I['b2'])
    return R(R(x + A) + B)
def main(path, seed=0, nl=1, wsfill='rand'):
    text = open(path).read()
    launches = re.findall(r'; @launch (?:kernel=(\w+) )?grid=\((\d+),1,1\) block=\((\d+),1,1\) lds=(\d+)', text)
    mem = Mem(); mem.codebase = mem.add('code', np.zeros(1 << 16, np.uint8)) + 4096
    ws = np.random.RandomState(1).randint(0, 256, size=8 << 20).astype(np.uint8)
    if wsfill == 'const': ws.view(U32)[:] = 0xdeadbeef
    out = np.full(448, 0x7fc0, np.uint16); dbg = np.zeros(256, np.uint8)
    arrs = {}
    I = mk(seed)
    ptrs = []
    for n in ['x', 'k', 'v', 'wq', 'wo', 'bx', 'w1', 'b1', 'w2', 'b2']:
        arrs[n] = bf16_round(I[n]).astype(np.uint16); ptrs.append(mem.add(n, arrs[n]))
    ptrs += [mem.add('out', out, True), mem.add('dbg', dbg, True), mem.add('ws', ws, True)]
    ka = mem.add('karg', np.array(ptrs, dtype=np.uint64))
    for it in range(nl):
        if it > 0:
            I = mk(seed + it)
            for n in arrs: arrs[n][...] = bf16_round(I[n]).astype(np.uint16)
        mem.log = []
        for kn, g, b, lds in launches:
            dbg[:] = 0
            g = int(g) + 3
            order = np.random.RandomState(it).permutation(g)
            rounds = run(text, kn or NAME + '_kernel', g, int(b), int(lds), mem, ka, order)
        got = bf16_to_f32(out); exp = ref(I); ex32 = ref(I, lambda z: np.asarray(z, F32))
        print('launch', it, 'rounds', rounds, 'rel_err vs bf16ref', np.linalg.norm(got - exp) / np.linalg.norm(exp),
              'vs f32ref', np.linalg.norm(got - ex32) / np.linalg.norm(ex32), 'ref-vs-f32', np.linalg.norm(exp - ex32) / np.linalg.norm(ex32),
              'maxabs', np.abs(got - exp).max())
        if it == 0:
            st = {}
            for name, rel, n in mem.log:
                d = st.setdefault(name, [set(), 0])
                ls = set((rel // 128).tolist()); d[0] |= ls; d[1] += len(ls)
            print({k: (len(v[0]), v[1]) for k, v in st.items()})
    print(got[:8], exp[:8])
if __name__ == '__main__':
    main(sys.argv[1], nl=int(sys.argv[2]) if len(sys.argv) > 2 else 1, wsfill=sys.argv[3] if len(sys.argv) > 3 else 'rand')
```
